```python
import torch

def _softmax(x, axis=-1):
    return torch.softmax(x, dim=axis)
def _gelu(x):
    return torch.nn.functional.gelu(x, approximate="tanh")
def _silu(x):
    return torch.nn.functional.silu(x)
def _sigmoid(x):
    return torch.sigmoid(x)
def _layernorm(x, axis=-1, eps=1e-5):
    m = x.mean(dim=axis, keepdim=True)
    v = x.var(dim=axis, keepdim=True, unbiased=False)
    return (x - m) / torch.sqrt(v + eps)
def _scatter_add(tgt, idx, src, axis=0):
    return tgt.clone().index_add_(axis, idx, src)
def _segment_sum(src, seg, n):
    out = torch.zeros((n,) + src.shape[1:], dtype=src.dtype)
    return out.index_add_(0, seg, src)
def _pad(x, pw):
    flat = tuple(v for pair in reversed(pw) for v in pair)
    return torch.nn.functional.pad(x, flat)

kernel_name = 'concat_heads__mha_block__linear_attn_block__prompt'

def setup_inputs():

    _w = (lambda a: (lambda t: t.to(torch.bfloat16) if t.is_floating_point() else t)(torch.as_tensor(a)))
    def _A_setup():
        B, S, D, H = 1, 2048, 640, 32
        return {
            "x": _w((lambda *s: torch.randn(*s, dtype=torch.bfloat16) * 0.2)(B, S, D)),
            "wqkv": _w((lambda *s: torch.randn(*s, dtype=torch.bfloat16) * 0.2)(D, 3 * D)),
            "wo": _w((lambda *s: torch.randn(*s, dtype=torch.bfloat16) * 0.05)(D, D)),
        }
    _A_in = _A_setup()

    def _B_setup():
        B, S, D = 1, 2048, 640
        return {
            "x": _w((lambda *s: torch.randn(*s, dtype=torch.bfloat16) * 0.05)(B, S, D)),
            "wqkv": _w((lambda *s: torch.randn(*s, dtype=torch.bfloat16) * 1.6)(D, 3 * D)),
            "wo": _w((lambda *s: torch.randn(*s, dtype=torch.bfloat16) * 0.05)(D, D)),
        }
    _B_in = _B_setup()

    return {
        "A_x": _A_in["x"],
        "A_wqkv": _A_in["wqkv"],
        "A_wo": _A_in["wo"],
        "B_x": _B_in["x"],
        "B_wqkv": _B_in["wqkv"],
        "B_wo": _B_in["wo"],
    }

def reference(A_x, A_wqkv, A_wo, B_x, B_wqkv, B_wo):
    def _A_ref(x, wqkv, wo):
        B, S, D = x.shape
        H = 32
        Dh = D // H
        qkv = (lambda x, *d: x.permute(*d))((x @ wqkv).reshape(B, S, 3, H, Dh), 2, 0, 3, 1, 4)
        q, k, v = qkv[0], qkv[1], qkv[2]
        scores = torch.einsum("bhqd,bhkd->bhqk", q, k) * (Dh ** -0.5)
        p = _softmax(scores, axis=-1)
        o = torch.einsum("bhqk,bhkd->bhqd", p, v)
        return (lambda x, *d: x.permute(*d))(o, 0, 2, 1, 3).reshape(B, S, D) @ wo

    def _B_ref(x, wqkv, wo):
        B, S, D = x.shape
        H = 32; Dh = D // H
        qkv = (lambda x, *d: x.permute(*d))((x @ wqkv).reshape(B, S, 3, H, Dh), 2, 0, 3, 1, 4)
        q, k, v = qkv[0], qkv[1], qkv[2]
        phi = lambda t: torch.where(t > 0, t + 1, torch.exp(t)) + 1e-6
        pq, pk = phi(q), phi(k)
        kv = torch.einsum("bhsd,bhse->bhde", pk, v)
        z = torch.einsum("bhsd->bhd", pk)
        num = torch.einsum("bhqd,bhde->bhqe", pq, kv)
        den = torch.einsum("bhqd,bhd->bhq", pq, z)[..., None] + 1e-6
        o = num / den
        return (lambda x, *d: x.permute(*d))(o, 0, 2, 1, 3).reshape(B, S, D) @ wo

    a = _A_ref(A_x, A_wqkv, A_wo)
    b = _B_ref(B_x, B_wqkv, B_wo)
    return torch.concatenate([a, b], axis=-1)
```

```python
import re

def v(i, n=1):
    return f"v{i}" if n == 1 else f"v[{i}:{i+n-1}]"
def s(i, n=1):
    return f"s{i}" if n == 1 else f"s[{i}:{i+n-1}]"
def a(i, n=1):
    return f"a{i}" if n == 1 else f"a[{i}:{i+n-1}]"

TRANS = ("v_exp_f32", "v_log_f32", "v_rcp_f32", "v_rsq_f32", "v_sqrt_f32", "v_sin_f32", "v_cos_f32", "v_rcp_iflag_f32",
         "v_exp_f16", "v_rcp_f16")

def split_ops(t):
    out, cur, d = [], "", 0
    for ch in t:
        if ch == "[": d += 1
        if ch == "]": d -= 1
        if ch == "," and d == 0:
            out.append(cur.strip()); cur = ""
        else:
            cur += ch
    if cur.strip(): out.append(cur.strip())
    return out

_reg = re.compile(r"^-?(?:abs\()?\|?([vsa])(?:(\d+)|\[(\d+):(\d+)\])")
def regs_of(op):
    op = op.strip()
    if op.startswith("vcc"): return {("s", "vcc")}
    if op.startswith("exec"): return {("s", "exec")}
    if op.startswith("m0"): return {("s", "m0")}
    m = _reg.match(op)
    if not m: return set()
    t = m.group(1)
    if m.group(2) is not None: return {(t, int(m.group(2)))}
    return {(t, i) for i in range(int(m.group(3)), int(m.group(4)) + 1)}

class Ins:
    def __init__(self, text):
        self.text = text
        t = text.split(";")[0].strip()
        self.label = t.endswith(":")
        self.directive = t.startswith(".")
        self.empty = (t == "")
        self.op = ""; self.w = set(); self.r = set(); self.kind = "none"
        self.passes = 0; self.srcC = set(); self.srcAB = set(); self.storedata = set()
        if self.label or self.directive or self.empty: return
        parts = t.split(None, 1)
        self.op = op = parts[0]
        rest = parts[1] if len(parts) > 1 else ""
        ops = split_ops(rest)
        firsts = [o.split()[0] if o.split() else o for o in ops]
        mods = " ".join(" ".join(o.split()[1:]) for o in ops)
        self.mods = mods
        R = [regs_of(o) for o in firsts]
        base = re.sub(r"_(e32|e64|sdwa|dpp)$", "", op)
        self.base = base
        if op.startswith("s_"):
            self.kind = "salu"
            if op == "s_nop": self.kind = "nop"; self.n = int(firsts[0], 0) + 1; return
            if op.startswith(("s_waitcnt", "s_barrier", "s_branch", "s_cbranch", "s_endpgm", "s_setprio", "s_sleep")):
                return
            if op.startswith("s_cmp"):
                for x in R: self.r |= x
                return
            if op.startswith(("s_load", "s_buffer_load", "s_memtime", "s_memrealtime", "s_atomic")):
                self.kind = "smem"
            if R: self.w |= R[0]
            for x in R[1:]: self.r |= x
            if "saveexec" in op: self.w |= {("s", "exec")}
            return
        if op.startswith(("v_mfma", "v_smfmac")):
            self.kind = "mfma"
            self.passes = 8 if "32x32" in op else 4
            self.w = R[0]
            if op.startswith("v_smfmac"):
                self.srcC = set(R[0]); self.srcAB = R[1] | R[2] | R[3]
            else:
                self.srcC = R[3]; self.srcAB = R[1] | R[2]
            self.r = self.srcC | self.srcAB
            return
        if op.startswith("ds_"):
            self.kind = "ds"
            if op.startswith(("ds_read", "ds_bpermute", "ds_permute", "ds_swizzle")):
                self.w = R[0]
                for x in R[1:]: self.r |= x
            else:
                for x in R: self.r |= x
            return
        if op.startswith(("buffer_", "global_", "flat_")):
            self.kind = "vmem"
            islds = " lds" in (" " + mods) or "load_lds" in op
            self.islds = islds
            if "load" in op and not islds:
                self.w = R[0]
                for x in R[1:]: self.r |= x
            else:
                for x in R: self.r |= x
                if islds: self.r |= {("s", "m0")}
                if "store" in op and ("x3" in op or "x4" in op):
                    self.storedata = R[0] if op.startswith("buffer") else R[1]
            return
        if op.startswith("v_"):
            self.kind = "trans" if base in TRANS else "valu"
            if base.startswith("v_cmp"):
                self.w = R[0]
                for x in R[1:]: self.r |= x
                if base.startswith("v_cmpx"): self.w |= {("s", "exec")}
                return
            if base.startswith(("v_permlane16_swap", "v_permlane32_swap", "v_swap")):
                self.w = R[0] | R[1]; self.r = R[0] | R[1]; return
            self.w = set(R[0])
            k = 1
            if base in ("v_add_co_u32", "v_sub_co_u32", "v_addc_co_u32", "v_subb_co_u32", "v_subrev_co_u32", "v_mad_u64_u32", "v_div_scale_f32"):
                self.w |= R[1]; k = 2
            for x in R[k:]: self.r |= x
            if base in ("v_fmac_f32", "v_dot2c_f32_bf16", "v_pk_fmac_f16") or "UNUSED_PRESERVE" in mods or op.endswith("_dpp") or "quad_perm" in mods or "row_" in mods:
                self.r |= R[0]
            self.isdpp = op.endswith("_dpp") or "quad_perm" in mods or "row_" in mods
            return
        raise ValueError("unknown instr " + text)

def isv(x): return x[0] in ("v", "a")

def need_states(p, c):
    n = 0
    pv = p.kind in ("valu", "trans")
    cv = c.kind in ("valu", "trans")
    pwv = {x for x in p.w if isv(x)}
    pws = {x for x in p.w if not isv(x)}
    if pv:
        if c.kind == "mfma" and pwv & c.r: n = max(n, 2)
        if cv and getattr(c, "isdpp", False) and pwv & c.r: n = max(n, 2)
        if cv and c.base.startswith("v_permlane") and pwv & c.r: n = max(n, 2)
        if cv and c.base in ("v_readlane_b32", "v_readfirstlane_b32") and pwv & c.r: n = max(n, 1)
        if p.kind == "trans" and c.kind in ("valu",) and pwv & c.r: n = max(n, 1)
        if pws:
            if c.kind == "vmem" and pws & c.r: n = max(n, 5)
            if cv and pws & c.r: n = max(n, 2)
            if cv and c.base in ("v_readlane_b32", "v_writelane_b32") and pws & c.r: n = max(n, 4)
            if c.kind in ("salu", "smem") and pws & c.r: n = max(n, 4)
            if ("s", "exec") in pws and c.kind == "mfma": n = max(n, 4)
            if ("s", "exec") in pws and cv and (getattr(c, "isdpp", False)): n = max(n, 5)
            if ("s", "exec") in pws and cv and (c.base.startswith("v_permlane") or "readlane" in c.base or "readfirstlane" in c.base): n = max(n, 4)
        if ("sdwa" in p.op or "op_sel" in getattr(p, "mods", "")) and cv and pwv & (c.r | c.w): n = max(n, 1)
    if p.kind == "salu" and ("s", "m0") in p.w and c.kind == "vmem" and getattr(c, "islds", False): n = max(n, 1)
    if p.kind == "vmem" and p.storedata and p.storedata & c.w:
        n = max(n, 2 if cv else 1)
    if p.kind == "mfma":
        big = 12 if p.passes == 8 else 8
        if c.kind == "mfma":
            if p.w & c.srcAB: n = max(n, big)
            if p.w & c.srcC:
                if not (p.w == c.srcC and p.passes == c.passes): n = max(n, 10 if p.passes == 8 else 6)
            elif p.w & c.w and not (p.w & c.srcC):
                pass
        elif cv or c.kind in ("ds", "vmem"):
            if p.w & (c.r | c.w): n = max(n, big)
        if cv and p.srcC & c.w: n = max(n, 7 if p.passes == 8 else 3)
    return n

def states(i):
    if i.label or i.directive or i.empty: return 0
    if i.kind == "nop": return i.n
    return 1

def pad_hazards(lines, fix=True, window=24):
    out = []
    viol = []
    for text in lines:
        c = Ins(text)
        if not (c.label or c.directive or c.empty) and c.kind != "nop":
            dist = 0; need = 0
            for p in reversed(out[-window*2:]):
                if p.label or p.directive or p.empty: continue
                if p.kind != "nop":
                    ns = need_states(p, c)
                    if ns > dist: need = max(need, ns - dist)
                dist += states(p)
                if dist >= window: break
            if need > 0:
                viol.append((text, need))
                if fix:
                    while need > 0:
                        k = min(need, 16)
                        out.append(Ins(f"s_nop {k-1}")); need -= k
        out.append(c)
    return [i.text for i in out], viol

class Asm:
    def __init__(self):
        self.lines = []
    def __call__(self, *ts):
        for t in ts:
            for l in t.split("\n"):
                self.lines.append(l.strip())
    def label(self, n): self.lines.append(n + ":")
    def c(self, t): self.lines.append("; " + t)

def check_loop(lines, name):
    _, viol = pad_hazards(lines + lines, fix=False)
    if viol: raise RuntimeError(f"loop {name} hazards: {viol[:5]}")

def kernel_text(name, lines, nv, ns=102, nacc=0, accum=None):
    acc_off = accum if accum is not None else ((nv + 3) // 4) * 4
    total = acc_off + nacc if nacc else nv
    body = "\n".join(("" if (l.endswith(":") or l.startswith(".")) else "  ") + l for l in lines)
    code = f""".text
.globl {name}
.p2align 8
.type {name},@function
{name}:
{body}
"""
    desc = f""".amdhsa_kernel {name}
  .amdhsa_next_free_vgpr {total}
  .amdhsa_next_free_sgpr {ns}
  .amdhsa_accum_offset {acc_off}
  .amdhsa_group_segment_fixed_size 0
  .amdhsa_kernarg_size 72
  .amdhsa_user_sgpr_count 2
  .amdhsa_user_sgpr_kernarg_segment_ptr 1
  .amdhsa_system_sgpr_workgroup_id_x 1
  .amdhsa_float_denorm_mode_32 3
.end_amdhsa_kernel
"""
    return code, desc
```

```python
from asmlib import *
from layout import *
import math, struct

def f2i(x): return struct.unpack("<I", struct.pack("<f", x))[0]

class Lgkm:
    def __init__(self, A): self.A = A; self.q = []
    def issue(self, tag, text): self.A(text); self.q.append(tag)
    def wait(self, tag):
        idx = [i for i, t in enumerate(self.q) if t == tag]
        if not idx: return
        last = idx[-1]
        n = len(self.q) - 1 - last
        assert n <= 15
        self.A(f"s_waitcnt lgkmcnt({n})")
        self.q = self.q[last+1:]

SLOT = 49152
VL = 1
VW = 2
VX = 6
XA0, XA1, WG, WC = 8, 9, 10, 11
T0 = 12
XF = 20
WF = 36
ACC = 52
NV = 132

def main_loop(A, name, frags):
    n = len(frags)
    A.label(f"{name}_loop")
    start = len(A.lines)
    A("s_cmp_eq_u32 s20, 9")
    A(f"s_cbranch_scc1 {name}_w0")
    A("s_waitcnt vmcnt(6)")
    A(f"s_branch {name}_w1")
    A.label(f"{name}_w0")
    A("s_waitcnt vmcnt(0)")
    A.label(f"{name}_w1")
    A("s_barrier")
    L = Lgkm(A)
    def rdW(f):
        ks, j = divmod(f, n)
        ar, cb, _, _ = frags[j]
        r = WF + 4 * (f % 4)
        L.issue(("W", f), f"ds_read_b64_tr_b16 {v(r,2)}, {v(ar)} offset:{ks*15360 + cb}")
        L.issue(("W", f), f"ds_read_b64_tr_b16 {v(r+2,2)}, {v(ar)} offset:{ks*15360 + 7680 + cb}")
    def rdX(ks):
        ar = XA0 if ks == 0 else XA1
        L.issue(("X", ks), f"ds_read_b128 {v(XF+8*ks,4)}, {v(ar)} offset:32768")
        L.issue(("X", ks), f"ds_read_b128 {v(XF+8*ks+4,4)}, {v(ar)} offset:{32768+512}")
    rdX(0); rdW(0); rdW(1); rdW(2); rdX(1)
    dma_at = {1: 0, 3: 1} if n == 5 else {2: 0, 6: 1}
    for f in range(2 * n):
        ks, j = divmod(f, n)
        if f + 3 < 2 * n:
            pass
        if j == 0: L.wait(("X", ks))
        L.wait(("W", f))
        _, _, ai, wA = frags[j]
        r = WF + 4 * (f % 4)
        for t in range(2):
            d = ACC + 4 * (2 * ai + t)
            x = XF + 8 * ks + 4 * t
            if wA: A(f"v_mfma_f32_16x16x32_bf16 {v(d,4)}, {v(r,4)}, {v(x,4)}, {v(d,4)}")
            else:  A(f"v_mfma_f32_16x16x32_bf16 {v(d,4)}, {v(x,4)}, {v(r,4)}, {v(d,4)}")
        if f + 3 < 2 * n: rdW(f + 3)
        if f in dma_at:
            g = dma_at[f]
            A("s_cmp_ge_u32 s20, 8")
            A(f"s_cbranch_scc1 {name}_nd{g}")
            if g == 0:
                A("s_add_u32 m0, s23, s25")
                A("s_nop 0")
                for t in range(4):
                    A(f"buffer_load_dwordx4 {v(VW+t)}, s[8:11], s21 offen offset:{1024*t} lds")
            else:
                A("s_add_u32 m0, s23, s26")
                A("s_nop 0")
                for t in range(2):
                    A(f"buffer_load_dwordx4 {v(VX+t)}, s[4:7], s22 offen offset:{1024*t} lds")
            A.label(f"{name}_nd{g}")
    A("s_add_u32 s21, s21, 245760")
    A("s_add_u32 s22, s22, 128")
    A(f"s_add_u32 s23, s23, {SLOT}")
    A(f"s_cmp_eq_u32 s23, {3*SLOT}")
    A("s_cselect_b32 s23, 0, s23")
    A(f"s_add_u32 s24, s24, {SLOT}")
    A(f"s_cmp_eq_u32 s24, {3*SLOT}")
    A(f"s_cselect_b32 s27, s28, s29")
    A("s_cselect_b32 s24, 0, s24")
    for r in (XA0, XA1, WG, WC):
        A(f"v_add_u32 {v(r)}, s27, {v(r)}")
    A("s_add_u32 s20, s20, 1")
    A("s_cmp_lt_u32 s20, 10")
    A(f"s_cbranch_scc1 {name}_loop")
    return A.lines[start:]

def phi(A, regs, tmp):
    for r, t in zip(regs, tmp):
        A(f"v_mul_f32 {v(t)}, s30, {v(r)}")
    for r, t in zip(regs, tmp):
        A(f"v_min_f32 {v(t)}, 0, {v(t)}")
    for r, t in zip(regs, tmp):
        A(f"v_exp_f32 {v(t)}, {v(t)}")
    for r, t in zip(regs, tmp):
        A(f"v_max_f32 {v(r)}, 0, {v(r)}")
    for r, t in zip(regs, tmp):
        A(f"v_add_f32 {v(r)}, {v(r)}, {v(t)}")
    for r, t in zip(regs, tmp):
        A(f"v_add_f32 {v(r)}, s31, {v(r)}")

def gen_k1():
    A = Asm()
    A("s_cmp_ge_u32 s2, 256")
    A("s_cbranch_scc1 k1_end")
    A("s_load_dwordx4 s[32:35], s[0:1], 0")
    A("s_load_dwordx4 s[36:39], s[0:1], 24")
    A("s_load_dwordx2 s[12:13], s[0:1], 64")
    A(f"v_and_b32 {v(VL)}, 63, v0")
    A("v_lshrrev_b32 v12, 6, v0")
    A("s_nop 0")
    A("v_readfirstlane_b32 s16, v12")
    A("s_and_b32 s3, s2, 7")
    A("s_lshr_b32 s40, s2, 3")
    A("s_lshr_b32 s17, s3, 2")
    A("s_and_b32 s18, s3, 1")
    A("s_lshl_b32 s18, s18, 3")
    A("s_and_b32 s41, s40, 7")
    A("s_add_u32 s18, s18, s41")
    A("s_bfe_u32 s19, s3, 0x10001")
    A("s_lshl_b32 s19, s19, 2")
    A("s_lshr_b32 s41, s40, 3")
    A("s_add_u32 s19, s19, s41")
    A("s_lshl_b32 s42, s16, 8")
    A("s_mul_i32 s43, s19, 160")
    A("s_mov_b32 s44, 0x8889")
    A("s_mov_b32 s45, 0x199a")
    for t in range(4):
        u, rho, cu, seg, k, tmp = 12, 13, 14, 15, 16, 17
        A(f"v_add_u32 v{u}, s42, {v(VL)}")
        if t: A(f"v_add_u32 v{u}, {64*t}, v{u}")
        A(f"v_mul_u32_u24 v{rho}, s44, v{u}")
        A(f"v_lshrrev_b32 v{rho}, 20, v{rho}")
        A(f"v_mul_u32_u24 v{tmp}, 30, v{rho}")
        A(f"v_sub_u32 v{cu}, v{u}, v{tmp}")
        A(f"v_mul_u32_u24 v{seg}, s45, v{cu}")
        A(f"v_lshrrev_b32 v{seg}, 16, v{seg}")
        A(f"v_mul_u32_u24 v{tmp}, 10, v{seg}")
        A(f"v_sub_u32 v{cu}, v{cu}, v{tmp}")
        A(f"v_and_b32 v{k}, 35, v{rho}")
        A(f"v_bfe_u32 v{tmp}, v{rho}, 2, 2")
        A(f"v_lshl_add_u32 v{k}, v{tmp}, 3, v{k}")
        A(f"v_bfe_u32 v{tmp}, v{rho}, 4, 1")
        A(f"v_lshl_add_u32 v{k}, v{tmp}, 2, v{k}")
        A(f"v_mul_u32_u24 v{k}, 3840, v{k}")
        A(f"v_mul_u32_u24 v{seg}, 1280, v{seg}")
        A(f"v_lshl_add_u32 v{k}, v{cu}, 4, v{k}")
        A(f"v_add3_u32 v{k}, v{k}, v{seg}, s43")
        if t: A(f"v_subrev_u32 v{k}, {1024*t}, v{k}")
        A(f"v_cmp_gt_u32 vcc, 1920, v{u}")
        A(f"v_mov_b32 v{tmp}, 0x7f000000")
        A(f"v_cndmask_b32 {v(VW+t)}, v{tmp}, v{k}, vcc")
    A("s_lshl_b32 s42, s18, 7")
    A("s_lshl_b32 s46, s16, 4")
    A("s_add_u32 s42, s42, s46")
    A("s_and_b32 s46, s16, 1")
    A("s_lshl_b32 s46, s46, 2")
    A(f"v_lshrrev_b32 v12, 3, {v(VL)}")
    A(f"v_add_u32 v12, s42, v12")
    A(f"v_mul_u32_u24 v12, 1280, v12")
    A(f"v_bfe_u32 v13, {v(VL)}, 4, 1")
    A(f"v_or_b32 v13, s46, v13")
    A(f"v_and_b32 v14, 7, {v(VL)}")
    A(f"v_xor_b32 v13, v13, v14")
    A(f"v_lshl_add_u32 {v(VX)}, v13, 4, v12")
    A(f"v_xor_b32 v13, 2, v13")
    A(f"v_lshl_add_u32 {v(VX+1)}, v13, 4, v12")
    A(f"v_add_u32 {v(VX+1)}, {8*1280-1024}, {v(VX+1)}")
    A("s_waitcnt lgkmcnt(0)")
    A("s_cmp_eq_u32 s17, 0")
    A("s_cselect_b32 s4, s32, s36")
    A("s_cselect_b32 s5, s33, s37")
    A("s_cselect_b32 s8, s34, s38")
    A("s_cselect_b32 s9, s35, s39")
    A(f"s_mov_b32 s6, {2048*640*2}")
    A("s_mov_b32 s7, 0x20000")
    A(f"s_mov_b32 s10, {640*1920*2}")
    A("s_mov_b32 s11, 0x20000")
    A(f"s_mov_b32 s14, {WS_SIZE}")
    A("s_mov_b32 s15, 0x20000")
    A("s_lshl_b32 s25, s16, 12")
    A("s_lshl_b32 s26, s16, 11")
    A("s_add_u32 s26, s26, 32768")
    A("s_mov_b32 s21, 0")
    A("s_mov_b32 s22, 0")
    for st in range(2):
        A(f"s_add_u32 m0, s25, {st*SLOT}")
        A("s_nop 0")
        for t in range(4):
            A(f"buffer_load_dwordx4 {v(VW+t)}, s[8:11], s21 offen offset:{1024*t} lds")
        A(f"s_add_u32 m0, s26, {st*SLOT}")
        A("s_nop 0")
        for t in range(2):
            A(f"buffer_load_dwordx4 {v(VX+t)}, s[4:7], s22 offen offset:{1024*t} lds")
        A("s_add_u32 s21, s21, 245760")
        A("s_add_u32 s22, s22, 128")
    A(f"s_mov_b32 s23, {2*SLOT}")
    A("s_mov_b32 s24, 0")
    A(f"s_mov_b32 s28, {(-2*SLOT) & 0xffffffff}")
    A(f"s_mov_b32 s29, {SLOT}")
    A("s_mov_b32 s20, 0")
    A("s_and_b32 s47, s16, 3")
    I, GQ = 12, 13
    A(f"v_and_b32 v{I}, 15, {v(VL)}")
    A(f"v_lshrrev_b32 v{GQ}, 4, {v(VL)}")
    A(f"v_lshrrev_b32 v14, 2, v{I}")
    A(f"v_and_b32 v15, 3, v{I}")
    A(f"v_lshl_add_u32 v16, v14, 3, v15")
    A(f"v_bfe_u32 v17, v{I}, 1, 1")
    A(f"v_lshl_add_u32 v17, v14, 1, v17")
    A(f"v_xor_b32 v17, v17, v{GQ}")
    A(f"v_lshlrev_b32 v17, 4, v17")
    A(f"v_lshl_add_u32 v17, v16, 7, v17")
    A("s_lshl_b32 s46, s47, 12")
    A(f"v_add_u32 {v(XA0)}, s46, v17")
    A(f"v_xor_b32 {v(XA1)}, 64, {v(XA0)}")
    A(f"v_lshrrev_b32 v17, 2, {v(VL)}")
    A(f"v_mul_u32_u24 v17, 480, v17")
    A(f"v_mul_u32_u24 v18, 40, v15")
    A(f"v_add_u32 {v(WG)}, v17, v18")
    A(f"v_lshl_add_u32 {v(WC)}, v15, 3, v17")
    for r in range(ACC, ACC + 80):
        A(f"v_mov_b32 {v(r)}, 0")
    A(f"s_mov_b32 s30, {f2i(math.log2(math.e))}")
    A(f"s_mov_b32 s31, {f2i(1e-6)}")
    A("s_lshl_b32 s48, s18, 2")
    A("s_add_u32 s48, s48, s47")
    A("s_cmp_lt_u32 s16, 4")
    A("s_cbranch_scc1 k1_q")
    A("s_cmp_eq_u32 s17, 0")
    A("s_cbranch_scc0 k1_kvb")

    def lane_helpers():
        A(f"v_and_b32 v{I}, 15, {v(VL)}")
        A(f"v_lshrrev_b32 v{GQ}, 4, {v(VL)}")
        A(f"v_lshrrev_b32 v14, 2, v{I}")
        A(f"v_and_b32 v15, 3, v{I}")
        A(f"v_lshl_add_u32 v16, v14, 3, v15")
    acc = lambda ai, t, r=0: ACC + 4 * (2 * ai + t) + r

    fr = [(WG, 160 + 8 * sidx, sidx, True) for sidx in range(5)] + \
         [(WC, 320 + 40 * sidx, 5 + sidx, False) for sidx in range(4)] + [(WG, 320 + 32, 9, False)]
    body = main_loop(A, "k1_kva", fr); check_loop(body, "kva")
    lane_helpers()
    A("s_lshl_b32 s40, s19, 8")
    A("s_add_u32 s40, s40, s48")
    A(f"s_mul_i32 s41, s40, {KVREC}")
    A(f"s_add_u32 s41, s41, {KV_OFF}")
    A(f"s_mov_b32 s42, {64*KVREC}")
    A(f"v_mul_lo_u32 v17, s42, v{GQ}")
    A(f"v_lshl_add_u32 v18, v16, 4, v17")
    A(f"v_lshl_add_u32 v19, v16, 3, v17")
    A("s_nop 4")
    P = XF
    for t in range(2):
        n2 = 40 + t
        A(f"v_mul_f32 v{n2}, {v(acc(0,t,0))}, {v(acc(0,t,0))}")
        for sidx in range(5):
            for r in range(4):
                if sidx == 0 and r == 0: continue
                A(f"v_fmac_f32 v{n2}, {v(acc(sidx,t,r))}, {v(acc(sidx,t,r))}")
        b = P + 10 * t
        for sidx in range(5):
            A(f"v_cvt_pk_bf16_f32 v{b+2*sidx}, {v(acc(sidx,t,0))}, {v(acc(sidx,t,1))}")
            A(f"v_cvt_pk_bf16_f32 v{b+2*sidx+1}, {v(acc(sidx,t,2))}, {v(acc(sidx,t,3))}")
        A(f"buffer_store_dwordx4 {v(b,4)}, v18, s[12:15], s41 offen offset:{64*t}")
        A(f"buffer_store_dwordx4 {v(b+4,4)}, v18, s[12:15], s41 offen offset:{512+64*t}")
        A(f"buffer_store_dwordx2 {v(b+8,2)}, v19, s[12:15], s41 offen offset:{1024+32*t}")
    A("v_max_f32 v40, v40, v41")
    for ror in (8, 4, 2, 1):
        A(f"v_max_f32_dpp v40, v40, v40 row_ror:{ror} row_mask:0xf bank_mask:0xf")
    A(f"v_lshlrev_b32 v41, 8, v{GQ}")
    A("s_lshl_b32 s43, s40, 2")
    A(f"s_add_u32 s43, s43, {KN_OFF}")
    A("buffer_store_dword v40, v41, s[12:15], s43 offen")
    A(f"v_mul_u32_u24 v17, 336, v{GQ}")
    A(f"v_lshl_add_u32 v18, v{I}, 4, v17")
    A(f"v_mul_lo_u32 v19, s42, v14")
    A(f"v_lshl_add_u32 v19, v15, 4, v19")
    A(f"v_add_u32 v19, v19, v17")
    A(f"v_mul_lo_u32 v42, s42, v15")
    A(f"v_add_u32 v42, v42, v17")
    for r in range(44, 48): A(f"v_mov_b32 v{r}, 0x3f803f80")
    A(f"buffer_store_dwordx4 v[44:47], v42, s[12:15], s41 offen offset:{1280+320}")
    for sidx in range(5):
        b = ACC + 4 * sidx
        for t in range(2):
            A(f"v_cvt_pk_bf16_f32 v{b+2*t}, {v(acc(5+sidx,t,0))}, {v(acc(5+sidx,t,1))}")
            A(f"v_cvt_pk_bf16_f32 v{b+2*t+1}, {v(acc(5+sidx,t,2))}, {v(acc(5+sidx,t,3))}")
        if sidx < 4:
            A(f"buffer_store_dwordx4 {v(b,4)}, v18, s[12:15], s41 offen offset:1280")
            A("s_add_u32 s41, s41, s42")
        else:
            A("s_lshl_b32 s43, s42, 2")
            A("s_sub_u32 s41, s41, s43")
            A(f"buffer_store_dwordx4 {v(b,4)}, v19, s[12:15], s41 offen offset:{1280+256}")
    A("s_endpgm")

    A.label("k1_q")
    fr = [(WG, 8 * sidx, sidx, True) for sidx in range(5)]
    body = main_loop(A, "k1_q", fr); check_loop(body, "q")
    lane_helpers()
    A("s_lshl_b32 s40, s19, 8")
    A("s_add_u32 s40, s40, s48")
    A(f"s_mul_i32 s41, s40, {QREC}")
    A(f"s_mul_i32 s43, s17, {QB_OFF}")
    A(f"s_add_u32 s41, s41, s43")
    A(f"s_mov_b32 s42, {64*QREC}")
    A(f"v_mul_lo_u32 v17, s42, v{GQ}")
    A(f"v_lshl_add_u32 v18, v16, 4, v17")
    A("s_cmp_eq_u32 s17, 0")
    A("s_cbranch_scc0 k1_qb")
    A(f"s_mov_b32 s44, {f2i(math.log2(math.e)/math.sqrt(20))}")
    for r in range(ACC, ACC + 40): A(f"v_mul_f32 v{r}, s44, v{r}")
    A("s_branch k1_qs")
    A.label("k1_qb")
    phi(A, list(range(ACC, ACC + 40)), list(range(ACC + 40, ACC + 80)))
    A.label("k1_qs")
    for t in range(2):
        b = P + 12 * t
        n2 = b + 10
        A(f"v_mul_f32 v{n2}, {v(acc(0,t,0))}, {v(acc(0,t,0))}")
        for sidx in range(5):
            for r in range(4):
                if sidx == 0 and r == 0: continue
                A(f"v_fmac_f32 v{n2}, {v(acc(sidx,t,r))}, {v(acc(sidx,t,r))}")
        A(f"v_mov_b32 v{b+11}, 0")
        for sidx in range(5):
            A(f"v_cvt_pk_bf16_f32 v{b+2*sidx}, {v(acc(sidx,t,0))}, {v(acc(sidx,t,1))}")
            A(f"v_cvt_pk_bf16_f32 v{b+2*sidx+1}, {v(acc(sidx,t,2))}, {v(acc(sidx,t,3))}")
        for g in range(3):
            A(f"buffer_store_dwordx4 {v(b+4*g,4)}, v18, s[12:15], s41 offen offset:{512*g+64*t}")
    A("s_endpgm")

    A.label("k1_kvb")
    fr = [(WC, 160 + 40 * sidx, sidx, False) for sidx in range(4)] + [(WG, 160 + 32, 4, False)] + \
         [(WC, 320 + 40 * sidx, 5 + sidx, False) for sidx in range(4)] + [(WG, 320 + 32, 9, False)]
    body = main_loop(A, "k1_kvb", fr); check_loop(body, "kvb")
    lane_helpers()
    VV = 20
    for sidx in range(5):
        for t in range(2):
            A(f"v_cvt_pk_bf16_f32 v{VV+4*sidx+2*t}, {v(acc(5+sidx,t,0))}, {v(acc(5+sidx,t,1))}")
            A(f"v_cvt_pk_bf16_f32 v{VV+4*sidx+2*t+1}, {v(acc(5+sidx,t,2))}, {v(acc(5+sidx,t,3))}")
    phi(A, list(range(ACC, ACC + 40)), list(range(ACC + 40, ACC + 80)))
    PK = ACC + 40
    for sidx in range(5):
        for t in range(2):
            A(f"v_cvt_pk_bf16_f32 v{PK+4*sidx+2*t}, {v(acc(sidx,t,0))}, {v(acc(sidx,t,1))}")
            A(f"v_cvt_pk_bf16_f32 v{PK+4*sidx+2*t+1}, {v(acc(sidx,t,2))}, {v(acc(sidx,t,3))}")
    ON = 40
    for r in range(ON, ON + 4): A(f"v_mov_b32 v{r}, 0x3f803f80")
    A(f"s_mul_i32 s40, s47, 6720")
    A(f"s_add_u32 s40, s40, {SLOT}")
    A(f"v_mul_u32_u24 v17, 80, v{I}")
    A(f"v_lshl_add_u32 v17, v{GQ}, 4, v17")
    A(f"v_add_u32 v17, s40, v17")
    A(f"v_mul_u32_u24 v18, 80, v15")
    A(f"v_mul_u32_u24 v19, 1680, v{GQ}")
    A(f"v_add3_u32 v19, v19, v18, s40")
    A(f"v_lshl_add_u32 v18, v{GQ}, 4, v18")
    A(f"v_add_u32 v18, s40, v18")
    dpool = [ACC + 4 * i for i in range(10)] + [112 + 4 * i for i in range(5)] + [44, 48, 2]
    jobs = []
    for h in range(4): jobs.append((PK + 4 * h, VV + 4 * h, 17, h * 1680, None))
    for h in range(4): jobs.append((PK + 4 * h, VV + 16, 18, h * 1680 + 1280, 0x000f000f000f000f << (4 * h)))
    for h in range(4): jobs.append((PK + 16, VV + 4 * h, 17, h * 1680 + 64 - 16 * h, 0xffff << (16 * h)))
    jobs.append((PK + 16, VV + 16, 19, 1280 + 64, 0xf0000f0000f0000f))
    for h in range(4): jobs.append((PK + 4 * h, ON, 17, h * 1680 + 1600, 0x0001000100010001))
    jobs.append((PK + 16, ON, 19, 1600 + 64, 0x0001000100010001))
    for d, (pa, pb, ar, off, m) in zip(dpool, jobs):
        A(f"v_mfma_f32_16x16x32_bf16 {v(d,4)}, {v(pa,4)}, {v(pb,4)}, 0")
    cur = None
    for d, (pa, pb, ar, off, m) in zip(dpool, jobs):
        if m != cur:
            if m is None: A("s_mov_b64 exec, -1")
            else:
                A(f"s_mov_b32 exec_lo, {m & 0xffffffff}")
                A(f"s_mov_b32 exec_hi, {m >> 32}")
            cur = m
        A(f"ds_write_b128 v{ar}, {v(d,4)} offset:{off}")
    A("s_mov_b64 exec, -1")
    A("s_waitcnt lgkmcnt(0)")
    A("s_barrier")
    A("v_subrev_u32 v12, 256, v0")
    A("s_mov_b32 s44, 0x271")
    A("s_lshl_b32 s40, s19, 6")
    A("s_add_u32 s40, s40, s18")
    A(f"s_mul_i32 s41, s40, 1680")
    A(f"s_add_u32 s41, s41, {KVP_OFF}")
    for rnd in range(2):
        if rnd: A("v_add_u32 v12, 256, v12")
        b = ACC + 16 * rnd
        A(f"v_min_u32 v13, 419, v12")
        A(f"v_lshlrev_b32 v13, 4, v13")
        A(f"v_add_u32 v13, {SLOT}, v13")
        for wv in range(4):
            A(f"ds_read_b128 {v(b+4*wv,4)}, v13 offset:{6720*wv}")
        A(f"v_mul_u32_u24 v14, s44, v12")
        A(f"v_lshrrev_b32 v14, 16, v14")
        A(f"v_mul_u32_u24 v15, {16*1680-1680}, v14")
        A(f"v_lshl_add_u32 v15, v12, 4, v15")
        A(f"v_mov_b32 v16, 0x7f000000")
        A(f"v_cmp_gt_u32 vcc, 420, v12")
        A(f"v_cndmask_b32 v{18+rnd}, v16, v15, vcc")
        A("s_waitcnt lgkmcnt(0)")
        for r in range(4):
            A(f"v_add_f32 v{b+r}, v{b+r}, v{b+4+r}")
            A(f"v_add_f32 v{b+8+r}, v{b+8+r}, v{b+12+r}")
        for r in range(4):
            A(f"v_add_f32 v{b+r}, v{b+r}, v{b+8+r}")
        A(f"buffer_store_dwordx4 {v(b,4)}, v{18+rnd}, s[12:15], s41 offen")
    A.label("k1_end")
    A("s_endpgm")
    lines, viol = pad_hazards(A.lines)
    return lines, NV, 3 * SLOT
```

```python
from asmlib import *
from layout import *
import math, struct
def f2i(x): return struct.unpack("<I", struct.pack("<f", x))[0]

CH = 8 * KVREC + 448
IMG = 3 * CH
LDS = IMG + 1536
VL = 1
KAA, KBA, VA = 2, 3, 4
DV = 5
IDX = 6
OA = 7
Q1, Q2 = 12, 16
KA, KB, V1, V2 = 20, 24, 28, 32
O = 36
S0, S1 = 52, 68
T = 84
NV = 128

def norm_store(A, o, tmp, eps, soff):
    l, l2 = tmp, tmp + 1
    A(f"v_mov_b32 v{l}, v{o+8}")
    A(f"v_mov_b32 v{l2}, v{o+8}")
    A(f"v_permlane32_swap_b32 v{l}, v{l2}")
    if eps: A(f"v_add_f32 v{l2}, {eps}, v{l2}")
    return l2

def finish_store(A, o, l2, tmp, soff):
    A(f"v_rcp_f32 v{l2}, v{l2}")
    for r in range(12): A(f"v_mul_f32 v{o+r}, v{o+r}, v{l2}")
    p = tmp + 2
    for g in range(3):
        A(f"v_cvt_pk_bf16_f32 v{p+2*g}, v{o+4*g}, v{o+4*g+1}")
        A(f"v_cvt_pk_bf16_f32 v{p+2*g+1}, v{o+4*g+2}, v{o+4*g+3}")
    A(f"v_permlane32_swap_b32 v{p}, v{p+2}")
    A(f"v_permlane32_swap_b32 v{p+1}, v{p+3}")
    A(f"buffer_store_dwordx4 {v(p,4)}, v{OA}, s[12:15], {soff} offen")
    A(f"buffer_store_dwordx2 {v(p+4,2)}, v{OA+1}, s[12:15], {soff} offen offset:32")

def negm_pack(A, dst, m, t1):
    A(f"v_and_b32 v{t1}, s30, v{m}")
    A(f"v_sub_f32 v{m}, v{t1}, v{m}")
    A(f"v_xor_b32 v{t1}, 0x80000000, v{t1}")
    A(f"v_perm_b32 v{dst}, v{m}, v{t1}, s31")

def gen_k2():
    A = Asm()
    A("s_cmp_ge_u32 s2, 256")
    A("s_cbranch_scc1 k2_end")
    A("s_load_dwordx2 s[12:13], s[0:1], 64")
    A(f"v_and_b32 v{VL}, 63, v0")
    A("v_lshrrev_b32 v84, 6, v0")
    A("s_nop 0")
    A("v_readfirstlane_b32 s16, v84")
    A("s_and_b32 s3, s2, 7")
    A("s_lshr_b32 s4, s2, 3")
    A("s_and_b32 s5, s4, 3")
    A("s_lshl_b32 s17, s3, 2")
    A("s_add_u32 s17, s17, s5")
    A("s_lshr_b32 s18, s4, 2")
    A("s_lshl_b32 s19, s18, 3")
    A("s_add_u32 s19, s19, s16")
    A(f"s_mov_b32 s14, {WS_SIZE}")
    A("s_mov_b32 s15, 0x20000")
    A("s_lshl_b32 s5, s17, 6")
    A("s_add_u32 s6, s5, s19")
    A(f"s_mul_i32 s20, s6, {QREC}")
    A(f"s_add_u32 s21, s20, {QB_OFF}")
    A("s_add_u32 s6, s5, s16")
    A(f"s_mul_i32 s22, s6, {KVREC}")
    A(f"s_add_u32 s22, s22, {KV_OFF}")
    A(f"s_mul_i32 s28, s5, {KVREC}")
    A(f"s_add_u32 s28, s28, {KV_OFF}")
    A("s_lshl_b32 s23, s5, 2")
    A(f"s_add_u32 s23, s23, {KN_OFF}")
    A(f"s_mul_i32 s24, s17, {16*1680}")
    A(f"s_add_u32 s24, s24, {KVP_OFF}")
    A(f"s_mul_i32 s25, s16, {KVREC}")
    L31, HH = 84, 85
    A(f"v_and_b32 v{L31}, 31, v{VL}")
    A(f"v_lshrrev_b32 v{HH}, 5, v{VL}")
    A(f"v_lshlrev_b32 v{DV}, 4, v{VL}")
    A(f"v_mov_b32 v{KAA}, v{DV}")
    A(f"v_lshlrev_b32 v{KBA}, 3, v{L31}")
    A(f"v_mul_u32_u24 v{VA}, 336, v{HH}")
    A(f"v_lshl_add_u32 v{VA}, v{L31}, 4, v{VA}")
    A(f"v_mov_b32 v86, 0x7f000000")
    A(f"v_cmp_gt_u32 vcc, 32, v{VL}")
    A(f"v_cndmask_b32 v87, v86, v{DV}, vcc")
    A("s_lshl_b32 s6, s19, 5")
    A(f"v_add_u32 v88, s6, v{L31}")
    A(f"v_mul_u32_u24 v88, 1280, v88")
    A("s_mul_i32 s6, s17, 40")
    A(f"v_add_u32 v88, s6, v88")
    A(f"v_cndmask_b32 v{OA+1}, v86, v88, vcc")
    A(f"v_lshl_add_u32 v{OA}, v{HH}, 4, v88")
    A("s_lshl_b32 s6, s16, 4")
    A(f"v_lshrrev_b32 v89, 2, v{VL}")
    A(f"v_add_u32 v89, s6, v89")
    A(f"v_min_u32 v89, 104, v89")
    A(f"v_and_b32 v90, 3, v{VL}")
    A(f"v_mul_u32_u24 v90, {4*1680}, v90")
    A(f"v_lshl_add_u32 v90, v89, 4, v90")
    A(f"v_lshlrev_b32 v91, 2, v{VL}")
    A("s_waitcnt lgkmcnt(0)")
    KP = 96
    A("s_add_u32 s29, s24, 3360")
    for t in range(4):
        A(f"buffer_load_dwordx4 {v(KP+4*t,4)}, v90, s[12:15], {'s24' if t < 2 else 's29'} offen offset:{1680*(t&1)}")
    def dma(slot_expr_lines):
        for l in slot_expr_lines: A(l)
        A("s_nop 0")
        for t in range(3):
            A(f"buffer_load_dwordx4 v{DV}, s[12:15], s22 offen offset:{1024*t} lds")
        A(f"s_add_u32 s22, s22, {8*KVREC}")
    dma(["s_mov_b32 m0, s25"])
    A(f"buffer_load_dwordx4 {v(Q1,4)}, v{DV}, s[12:15], s20 offen")
    A(f"buffer_load_dwordx4 {v(Q2,4)}, v87, s[12:15], s20 offen offset:1024")
    A(f"buffer_load_dword v92, v91, s[12:15], s23 offen")
    PQ1, PQ2 = 112, 116
    A(f"buffer_load_dwordx4 {v(PQ1,4)}, v{DV}, s[12:15], s21 offen")
    A(f"buffer_load_dwordx4 {v(PQ2,4)}, v87, s[12:15], s21 offen offset:1024")
    dma([f"s_add_u32 m0, s25, {CH}"])
    A("s_mov_b32 s30, 0xffff0000")
    A("s_mov_b32 s31, 0x07060302")
    A(f"v_mov_b32 v{IDX}, 0xdddddddd")
    A(f"v_mov_b32 v{KB+2}, 0x3f803f80")
    A(f"v_mov_b32 v{KB+3}, 0")
    for r in range(16): A(f"v_mov_b32 v{O+r}, 0")
    for r in range(8, 16): A(f"v_mov_b32 v{S1+r}, 0")
    for r in range(4): A(f"v_mov_b32 v{V2+r}, 0")
    A("s_mov_b32 s6, 0x3334")
    A("v_mul_u32_u24 v93, s6, v89")
    A("v_lshrrev_b32 v93, 16, v93")
    A("v_mul_u32_u24 v94, 5, v93")
    A("v_sub_u32 v94, v89, v94")
    A("v_lshrrev_b32 v95, 1, v94")
    A("v_lshlrev_b32 v95, 9, v95")
    A("v_lshl_add_u32 v95, v93, 4, v95")
    A("v_and_b32 v94, 1, v94")
    A("v_lshl_add_u32 v95, v94, 3, v95")
    A("s_waitcnt vmcnt(11)")
    for r in range(4):
        A(f"v_add_f32 v{KP+r}, v{KP+r}, v{KP+4+r}")
        A(f"v_add_f32 v{KP+8+r}, v{KP+8+r}, v{KP+12+r}")
    for r in range(4): A(f"v_add_f32 v{KP+r}, v{KP+r}, v{KP+8+r}")
    for r in range(4): A(f"v_add_f32_dpp v{KP+r}, v{KP+r}, v{KP+r} quad_perm:[1,0,3,2] row_mask:0xf bank_mask:0xf")
    for r in range(4): A(f"v_add_f32_dpp v{KP+r}, v{KP+r}, v{KP+r} quad_perm:[2,3,0,1] row_mask:0xf bank_mask:0xf")
    A(f"v_cvt_pk_bf16_f32 v{KP}, v{KP}, v{KP+1}")
    A(f"v_cvt_pk_bf16_f32 v{KP+1}, v{KP+2}, v{KP+3}")
    A(f"ds_write_b64 v95, {v(KP,2)} offset:{IMG}")
    A("s_waitcnt vmcnt(3)")
    for ror in (8, 4, 2, 1):
        A(f"v_max_f32_dpp v92, v92, v92 row_ror:{ror} row_mask:0xf bank_mask:0xf")
    A("v_mov_b32 v93, v92")
    A("v_permlane16_swap_b32 v92, v93")
    A("v_max_f32 v92, v92, v93")
    A("v_mov_b32 v93, v92")
    A("v_permlane32_swap_b32 v92, v93")
    A("v_max_f32 v92, v92, v93")
    A(f"v_mul_f32 v92, v92, v{Q2+2}")
    A("v_sqrt_f32 v92, v92")
    A(f"v_mul_f32 v92, {f2i(1.03125)}, v92")
    negm_pack(A, Q2 + 2, 92, 93)
    A(f"v_mov_b32 v{Q2+3}, 0")
    A(f"v_mov_b32 v{PQ2+2}, 0")
    A(f"v_mov_b32 v{PQ2+3}, 0")
    A("s_waitcnt lgkmcnt(0)")
    A("s_barrier")
    G1, G2 = 120, 124
    A(f"ds_read_b128 {v(G1,4)}, v{DV} offset:{IMG}")
    A(f"v_lshlrev_b32 v93, 1, v{KBA}")
    A(f"ds_read_b64 {v(G2,2)}, v93 offset:{IMG+1024}")
    A(f"ds_read_b128 {v(KA,4)}, v{KAA}")
    A(f"ds_read_b64 {v(KB,2)}, v{KBA} offset:1024")
    A(f"v_mov_b32 v{G2+2}, 0")
    A(f"v_mov_b32 v{G2+3}, 0")
    OB = 96
    A("s_waitcnt lgkmcnt(2)")
    A(f"v_mfma_f32_32x32x16_bf16 {v(OB,16)}, {v(G1,4)}, {v(PQ1,4)}, 0")
    A(f"v_mfma_f32_32x32x16_bf16 {v(OB,16)}, {v(G2,4)}, {v(PQ2,4)}, {v(OB,16)}")
    A("s_waitcnt lgkmcnt(0)")
    A(f"v_mfma_f32_32x32x16_bf16 {v(S0,16)}, {v(KA,4)}, {v(Q1,4)}, 0")
    A(f"v_mfma_f32_32x32x16_bf16 {v(S0,16)}, {v(KB,4)}, {v(Q2,4)}, {v(S0,16)}")
    A(f"ds_read_b128 {v(KA,4)}, v{KAA} offset:{KVREC}")
    A(f"ds_read_b64 {v(KB,2)}, v{KBA} offset:{KVREC+1024}")
    A(f"ds_read_b128 {v(V1,4)}, v{VA} offset:1280")
    A(f"s_mov_b32 s26, {O_OFF}")
    A(f"s_mov_b32 s27, {O_OFF + 2048*1280}")
    l2 = norm_store(A, OB, 84, f2i(1e-6), "s27")
    finish_store(A, OB, l2, 84, "s27")
    A("s_mov_b32 s8, 0")
    A(f"s_mov_b32 s9, {2*CH}")
    A("s_mov_b32 s10, 0")
    A(f"s_mov_b32 s34, {CH}")
    A(f"s_mov_b32 s35, {(-2*CH) & 0xffffffff}")
    A(".p2align 6")
    A.label("k2_loop")
    start = len(A.lines)
    for i in range(8):
        S = S0 if i % 2 == 0 else S1
        S2 = S1 if i % 2 == 0 else S0
        e = lambda r: A(f"v_exp_f32 v{S+r}, v{S+r}")
        if i == 6:
            A("s_waitcnt vmcnt(0)")
            A("s_barrier")
            A(f"s_add_u32 s10, s10, {CH}")
            A(f"s_cmp_eq_u32 s10, {3*CH}")
            A("s_cselect_b32 s11, s35, s34")
            A("s_cselect_b32 s10, 0, s10")
            A(f"v_add_u32 v{KAA}, s11, v{KAA}")
            A(f"v_add_u32 v{KBA}, s11, v{KBA}")
            A("s_cmp_ge_u32 s8, 6")
            A("s_cbranch_scc1 k2_nodma")
            dma(["s_add_u32 m0, s25, s9"])
            A(f"s_add_u32 s9, s9, {CH}")
            A(f"s_cmp_eq_u32 s9, {3*CH}")
            A("s_cselect_b32 s9, 0, s9")
            A.label("k2_nodma")
        e(0); e(1)
        A("s_waitcnt lgkmcnt(3)")
        A(f"v_smfmac_f32_32x32x32_bf16 {v(O,16)}, {v(V2,4)}, {v(S2+8,8)}, v{IDX}")
        A(f"ds_read_b128 {v(V2,4)}, v{VA} offset:{i*KVREC + 1280 + 672}")
        if i == 7: A(f"v_add_u32 v{VA}, s11, v{VA}")
        e(2); e(3); e(4); e(5)
        A("s_waitcnt lgkmcnt(3)")
        A(f"v_mfma_f32_32x32x16_bf16 {v(S2,16)}, {v(KA,4)}, {v(Q1,4)}, 0")
        A(f"ds_read_b128 {v(KA,4)}, v{KAA} offset:{((i+2)%8)*KVREC}")
        e(6); e(7); e(8); e(9)
        A("s_waitcnt lgkmcnt(3)")
        A(f"v_mfma_f32_32x32x16_bf16 {v(S2,16)}, {v(KB,4)}, {v(Q2,4)}, {v(S2,16)}")
        A(f"ds_read_b64 {v(KB,2)}, v{KBA} offset:{((i+2)%8)*KVREC + 1024}")
        e(10); e(11); e(12); e(13)
        A("s_waitcnt lgkmcnt(3)")
        A(f"v_smfmac_f32_32x32x32_bf16 {v(O,16)}, {v(V1,4)}, {v(S,8)}, v{IDX}")
        A(f"ds_read_b128 {v(V1,4)}, v{VA} offset:{((i+1)%8)*KVREC + 1280}")
        if i == 7:
            A("s_add_u32 s8, s8, 1")
            A("s_cmp_lt_u32 s8, 8")
        else:
            A("s_nop 1")
        e(14); e(15)
    A("s_cbranch_scc1 k2_loop")
    check_loop(A.lines[start:], "k2")
    A("s_waitcnt lgkmcnt(0)")
    A(f"v_smfmac_f32_32x32x32_bf16 {v(O,16)}, {v(V2,4)}, {v(S1+8,8)}, v{IDX}")
    l2 = norm_store(A, O, 84, None, "s26")
    A(f"v_cmp_nle_f32 vcc, {f2i(2.0**-60)}, v{l2}")
    A("s_cbranch_vccnz k2_slow")
    A.label("k2_fin")
    finish_store(A, O, l2, 84, "s26")
    A.label("k2_end")
    A("s_endpgm")
    A.label("k2_slow")
    M = 90
    A(f"v_mov_b32 v{Q2+2}, 0")
    A(f"v_mov_b32 v{M}, 0xff800000")
    A(f"v_and_b32 v91, 31, v{VL}")
    A(f"v_lshlrev_b32 v92, 3, v91")
    A(f"v_lshrrev_b32 v93, 5, v{VL}")
    A(f"v_mul_u32_u24 v93, 336, v93")
    A(f"v_lshl_add_u32 v93, v91, 4, v93")
    A("s_mov_b32 s8, 0")
    A("s_mov_b32 s9, s28")
    A.label("k2_s1")
    A(f"buffer_load_dwordx4 {v(KA,4)}, v{DV}, s[12:15], s9 offen")
    A(f"buffer_load_dwordx2 {v(KB,2)}, v92, s[12:15], s9 offen offset:1024")
    A("s_waitcnt vmcnt(0)")
    A(f"v_mfma_f32_32x32x16_bf16 {v(S0,16)}, {v(KA,4)}, {v(Q1,4)}, 0")
    A(f"v_mfma_f32_32x32x16_bf16 {v(S0,16)}, {v(KB,4)}, {v(Q2,4)}, {v(S0,16)}")
    for r in range(0, 16, 2): A(f"v_max3_f32 v{M}, v{S0+r}, v{S0+r+1}, v{M}")
    A(f"s_add_u32 s9, s9, {KVREC}")
    A("s_add_u32 s8, s8, 1")
    A("s_cmp_lt_u32 s8, 64")
    A("s_cbranch_scc1 k2_s1")
    A(f"v_mov_b32 v94, v{M}")
    A(f"v_permlane32_swap_b32 v{M}, v94")
    A(f"v_max_f32 v{M}, v{M}, v94")
    negm_pack(A, Q2 + 2, M, 94)
    A(f"v_cmp_gt_u32 vcc, 32, v{VL}")
    A(f"v_cndmask_b32 v{Q2+2}, 0, v{Q2+2}, vcc")
    for r in range(16): A(f"v_mov_b32 v{O+r}, 0")
    A("s_mov_b32 s8, 0")
    A("s_mov_b32 s9, s28")
    A.label("k2_s2")
    A(f"buffer_load_dwordx4 {v(KA,4)}, v{DV}, s[12:15], s9 offen")
    A(f"buffer_load_dwordx2 {v(KB,2)}, v92, s[12:15], s9 offen offset:1024")
    A(f"buffer_load_dwordx4 {v(V1,4)}, v93, s[12:15], s9 offen offset:1280")
    A(f"buffer_load_dwordx4 {v(V2,4)}, v93, s[12:15], s9 offen offset:{1280+672}")
    A("s_waitcnt vmcnt(0)")
    A(f"v_mfma_f32_32x32x16_bf16 {v(S0,16)}, {v(KA,4)}, {v(Q1,4)}, 0")
    A(f"v_mfma_f32_32x32x16_bf16 {v(S0,16)}, {v(KB,4)}, {v(Q2,4)}, {v(S0,16)}")
    for r in range(16): A(f"v_exp_f32 v{S0+r}, v{S0+r}")
    A(f"v_smfmac_f32_32x32x32_bf16 {v(O,16)}, {v(V1,4)}, {v(S0,8)}, v{IDX}")
    A(f"v_smfmac_f32_32x32x32_bf16 {v(O,16)}, {v(V2,4)}, {v(S0+8,8)}, v{IDX}")
    A(f"s_add_u32 s9, s9, {KVREC}")
    A("s_add_u32 s8, s8, 1")
    A("s_cmp_lt_u32 s8, 64")
    A("s_nop 7")
    A("s_cbranch_scc1 k2_s2")
    A("s_nop 15")
    l2b = norm_store(A, O, 84, None, "s26")
    A("s_nop 1")
    A("s_branch k2_fin")
    lines, viol = pad_hazards(A.lines)
    return lines, NV, LDS
```

```python
from asmlib import *
from layout import *

SCR = 102400
LDS = SCR + 1024
VL = 1
VD = 2
VO = 5
WA = 6
OUT = 7
OF = 16
WF = 96
ACC = 112
NV = 132

class Lgkm:
    def __init__(self, A): self.A = A; self.q = []
    def issue(self, tag, text): self.A(text); self.q.append(tag)
    def wait(self, tag):
        idx = [i for i, t in enumerate(self.q) if t == tag]
        if not idx: return
        last = idx[-1]
        n = len(self.q) - 1 - last
        assert n <= 15
        self.A(f"s_waitcnt lgkmcnt({n})")
        self.q = self.q[last+1:]

def gen_k3():
    A = Asm()
    A("s_cmp_ge_u32 s2, 256")
    A("s_cbranch_scc1 k3_end")
    A("s_load_dwordx2 s[32:33], s[0:1], 16")
    A("s_load_dwordx2 s[34:35], s[0:1], 40")
    A("s_load_dwordx2 s[8:9], s[0:1], 48")
    A("s_load_dwordx2 s[12:13], s[0:1], 64")
    A(f"v_and_b32 v{VL}, 63, v0")
    A("v_lshrrev_b32 v8, 6, v0")
    A("s_nop 0")
    A("v_readfirstlane_b32 s16, v8")
    A("s_and_b32 s3, s2, 7")
    A("s_lshr_b32 s40, s2, 3")
    A("s_lshr_b32 s17, s3, 2")
    A("s_and_b32 s18, s3, 3")
    A("s_lshl_b32 s18, s18, 2")
    A("s_and_b32 s41, s40, 3")
    A("s_add_u32 s18, s18, s41")
    A("s_lshr_b32 s19, s40, 2")
    A("s_mul_i32 s42, s16, 192")
    A("s_mul_i32 s43, s19, 160")
    A("s_mov_b32 s44, 0x199a")
    for t in range(3):
        u, rho, cu, k, tmp = 8, 9, 10, 11, 12
        A(f"v_add_u32 v{u}, s42, v{VL}")
        if t: A(f"v_add_u32 v{u}, {64*t}, v{u}")
        A(f"v_mul_u32_u24 v{rho}, s44, v{u}")
        A(f"v_lshrrev_b32 v{rho}, 16, v{rho}")
        A(f"v_mul_u32_u24 v{tmp}, 10, v{rho}")
        A(f"v_sub_u32 v{cu}, v{u}, v{tmp}")
        A(f"v_and_b32 v{k}, 0xe3, v{rho}")
        A(f"v_bfe_u32 v{tmp}, v{rho}, 2, 2")
        A(f"v_lshl_add_u32 v{k}, v{tmp}, 3, v{k}")
        A(f"v_bfe_u32 v{tmp}, v{rho}, 4, 1")
        A(f"v_lshl_add_u32 v{k}, v{tmp}, 2, v{k}")
        A(f"v_mul_u32_u24 v{k}, 1280, v{k}")
        A(f"v_lshl_add_u32 v{k}, v{cu}, 4, v{k}")
        A(f"v_add_u32 v{k}, s43, v{k}")
        A(f"v_cmp_gt_u32 vcc, 1280, v{u}")
        A(f"v_mov_b32 v{tmp}, 0x7f000000")
        A(f"v_cndmask_b32 v{VD+t}, v{tmp}, v{k}, vcc")
    A("s_lshl_b32 s42, s18, 7")
    A("s_lshl_b32 s46, s16, 4")
    A("s_add_u32 s42, s42, s46")
    A(f"v_and_b32 v8, 15, v{VL}")
    A(f"v_lshrrev_b32 v9, 4, v{VL}")
    A("v_add_u32 v8, s42, v8")
    A("v_mul_u32_u24 v10, 1280, v8")
    A(f"v_lshl_add_u32 v{VO}, v9, 4, v10")
    A("s_mul_i32 s46, s17, 1280")
    A("s_add_u32 s46, s46, s43")
    A("v_lshlrev_b32 v10, 1, v10")
    A("v_lshl_add_u32 v10, v9, 3, v10")
    A(f"v_add_u32 v{OUT}, s46, v10")
    A(f"v_lshrrev_b32 v10, 2, v{VL}")
    A("v_mul_u32_u24 v10, 160, v10")
    A(f"v_and_b32 v11, 3, v{VL}")
    A(f"v_lshl_add_u32 v{WA}, v11, 3, v10")
    A(f"s_mul_i32 s20, s17, {2048*1280}")
    A(f"s_add_u32 s20, s20, {O_OFF}")
    for t in range(3):
        A(f"s_mul_i32 s{24+t}, s16, 3")
        A(f"s_add_u32 s{24+t}, s{24+t}, {t}")
        A(f"s_cmp_lt_u32 s{24+t}, 20")
        A(f"s_cselect_b32 s{28+t}, 20480, 0")
        A(f"s_lshl_b32 s{24+t}, s{24+t}, 10")
        A(f"s_cmp_eq_u32 s{28+t}, 0")
        A(f"s_cselect_b32 s{24+t}, {SCR}, s{24+t}")
    A("s_waitcnt lgkmcnt(0)")
    A("s_cmp_eq_u32 s17, 0")
    A("s_cselect_b32 s4, s32, s34")
    A("s_cselect_b32 s5, s33, s35")
    A(f"s_mov_b32 s6, {640*640*2}")
    A("s_mov_b32 s7, 0x20000")
    A(f"s_mov_b32 s10, {2048*1280*2}")
    A("s_mov_b32 s11, 0x20000")
    A(f"s_mov_b32 s14, {WS_SIZE}")
    A("s_mov_b32 s15, 0x20000")
    A("s_mov_b32 s21, 0")
    for st in range(5):
        for t in range(3):
            A(f"s_mov_b32 m0, s{24+t}")
            A(f"s_add_u32 s{24+t}, s{24+t}, s{28+t}")
            A(f"buffer_load_dwordx4 v{VD+t}, s[4:7], s21 offen lds")
        for ks in range(4):
            kk = 4 * st + ks
            A(f"buffer_load_dwordx4 {v(OF+4*kk,4)}, v{VO}, s[12:15], s20 offen offset:{64*kk}")
        A(f"s_add_u32 s21, s21, {128*1280}")
    for r in range(ACC, ACC + 20): A(f"v_mov_b32 v{r}, 0")
    for st in range(5):
        A(f"s_waitcnt vmcnt({7*(4-st)})")
        A("s_barrier")
        L = Lgkm(A)
        def rdW(f):
            ks, j = divmod(f, 5)
            r = WF + 4 * (f % 4)
            off = (st % 3) * 20480 + ks * 5120 + 32 * j
            L.issue(f, f"ds_read_b64_tr_b16 {v(r,2)}, v{WA} offset:{off}")
            L.issue(f, f"ds_read_b64_tr_b16 {v(r+2,2)}, v{WA} offset:{off + 2560}")
        if st == 3: A(f"v_add_u32 v{WA}, 61440, v{WA}")
        rdW(0); rdW(1); rdW(2)
        for f in range(20):
            ks, j = divmod(f, 5)
            L.wait(f)
            r = WF + 4 * (f % 4)
            d = ACC + 4 * j
            A(f"v_mfma_f32_16x16x32_bf16 {v(d,4)}, {v(r,4)}, {v(OF+4*(4*st+ks),4)}, {v(d,4)}")
            if f + 3 < 20: rdW(f + 3)
    for j in range(5):
        d = ACC + 4 * j
        A(f"v_cvt_pk_bf16_f32 v{16+2*j}, v{d}, v{d+1}")
        A(f"v_cvt_pk_bf16_f32 v{17+2*j}, v{d+2}, v{d+3}")
        A(f"buffer_store_dwordx2 {v(16+2*j,2)}, v{OUT}, s[8:11], 0 offen offset:{32*j}")
    A.label("k3_end")
    A("s_endpgm")
    lines, viol = pad_hazards(A.lines)
    return lines, NV, LDS
```

```python
import sys
sys.path.insert(0, "gen")
from asmlib import *
import k1, k2, k3
NAME = "concat_heads__mha_block__linear_attn_block__prompt"
def build(path):
    ks = [("k1_kernel", k1.gen_k1(), 512), ("k2_kernel", k2.gen_k2(), 512), ("k3_kernel", k3.gen_k3(), 512)]
    hdr = []
    code = []; desc = []
    for name, (lines, nv, lds), blk in ks:
        hdr.append(f"; @launch kernel={name} grid=(256,1,1) block=({blk},1,1) lds={lds}")
        c, d = kernel_text(name, lines, nv, ns=96)
        code.append(c); desc.append(".p2align 6\n" + d)
    txt = "\n".join(hdr) + '\n.amdgcn_target "amdgcn-amd-amdhsa--gfx950"\n' + "".join(code) + '.section .rodata,"a"\n' + "".join(desc)
    open(path, "w").write(txt)
if __name__ == "__main__":
    build(sys.argv[1] if len(sys.argv) > 1 else f"cdna_kernels/{NAME}.s")
```

```python
import re

def v(i, n=1):
    return f"v{i}" if n == 1 else f"v[{i}:{i+n-1}]"
def s(i, n=1):
    return f"s{i}" if n == 1 else f"s[{i}:{i+n-1}]"
def a(i, n=1):
    return f"a{i}" if n == 1 else f"a[{i}:{i+n-1}]"

TRANS = ("v_exp_f32", "v_log_f32", "v_rcp_f32", "v_rsq_f32", "v_sqrt_f32", "v_sin_f32", "v_cos_f32", "v_rcp_iflag_f32",
         "v_exp_f16", "v_rcp_f16")

def split_ops(t):
    out, cur, d = [], "", 0
    for ch in t:
        if ch == "[": d += 1
        if ch == "]": d -= 1
        if ch == "," and d == 0:
            out.append(cur.strip()); cur = ""
        else:
            cur += ch
    if cur.strip(): out.append(cur.strip())
    return out

_reg = re.compile(r"^-?(?:abs\()?\|?([vsa])(?:(\d+)|\[(\d+):(\d+)\])")
def regs_of(op):
    op = op.strip()
    if op.startswith("vcc"): return {("s", "vcc")}
    if op.startswith("exec"): return {("s", "exec")}
    if op.startswith("m0"): return {("s", "m0")}
    m = _reg.match(op)
    if not m: return set()
    t = m.group(1)
    if m.group(2) is not None: return {(t, int(m.group(2)))}
    return {(t, i) for i in range(int(m.group(3)), int(m.group(4)) + 1)}

class Ins:
    def __init__(self, text):
        self.text = text
        t = text.split(";")[0].strip()
        self.label = t.endswith(":")
        self.directive = t.startswith(".")
        self.empty = (t == "")
        self.op = ""; self.w = set(); self.r = set(); self.kind = "none"
        self.passes = 0; self.srcC = set(); self.srcAB = set(); self.storedata = set()
        if self.label or self.directive or self.empty: return
        parts = t.split(None, 1)
        self.op = op = parts[0]
        rest = parts[1] if len(parts) > 1 else ""
        ops = split_ops(rest)
        firsts = [o.split()[0] if o.split() else o for o in ops]
        mods = " ".join(" ".join(o.split()[1:]) for o in ops)
        self.mods = mods
        R = [regs_of(o) for o in firsts]
        base = re.sub(r"_(e32|e64|sdwa|dpp)$", "", op)
        self.base = base
        if op.startswith("s_"):
            self.kind = "salu"
            if op == "s_nop": self.kind = "nop"; self.n = int(firsts[0], 0) + 1; return
            if op.startswith(("s_waitcnt", "s_barrier", "s_branch", "s_cbranch", "s_endpgm", "s_setprio", "s_sleep")):
                return
            if op.startswith("s_cmp"):
                for x in R: self.r |= x
                return
            if op.startswith(("s_load", "s_buffer_load", "s_memtime", "s_memrealtime", "s_atomic")):
                self.kind = "smem"
            if R: self.w |= R[0]
            for x in R[1:]: self.r |= x
            if "saveexec" in op: self.w |= {("s", "exec")}
            return
        if op.startswith(("v_mfma", "v_smfmac")):
            self.kind = "mfma"
            self.passes = 8 if "32x32" in op else 4
            self.w = R[0]
            if op.startswith("v_smfmac"):
                self.srcC = set(R[0]); self.srcAB = R[1] | R[2] | R[3]
            else:
                self.srcC = R[3]; self.srcAB = R[1] | R[2]
            self.r = self.srcC | self.srcAB
            return
        if op.startswith("ds_"):
            self.kind = "ds"
            if op.startswith(("ds_read", "ds_bpermute", "ds_permute", "ds_swizzle")):
                self.w = R[0]
                for x in R[1:]: self.r |= x
            else:
                for x in R: self.r |= x
            return
        if op.startswith(("buffer_", "global_", "flat_")):
            self.kind = "vmem"
            islds = " lds" in (" " + mods) or "load_lds" in op
            self.islds = islds
            if "load" in op and not islds:
                self.w = R[0]
                for x in R[1:]: self.r |= x
            else:
                for x in R: self.r |= x
                if islds: self.r |= {("s", "m0")}
                if "store" in op and ("x3" in op or "x4" in op):
                    self.storedata = R[0] if op.startswith("buffer") else R[1]
            return
        if op.startswith("v_"):
            self.kind = "trans" if base in TRANS else "valu"
            if base.startswith("v_cmp"):
                self.w = R[0]
                for x in R[1:]: self.r |= x
                if base.startswith("v_cmpx"): self.w |= {("s", "exec")}
                return
            if base.startswith(("v_permlane16_swap", "v_permlane32_swap", "v_swap")):
                self.w = R[0] | R[1]; self.r = R[0] | R[1]; return
            self.w = set(R[0])
            k = 1
            if base in ("v_add_co_u32", "v_sub_co_u32", "v_addc_co_u32", "v_subb_co_u32", "v_subrev_co_u32", "v_mad_u64_u32", "v_div_scale_f32"):
                self.w |= R[1]; k = 2
            for x in R[k:]: self.r |= x
            if base in ("v_fmac_f32", "v_dot2c_f32_bf16", "v_pk_fmac_f16") or "UNUSED_PRESERVE" in mods or op.endswith("_dpp") or "quad_perm" in mods or "row_" in mods:
                self.r |= R[0]
            self.isdpp = op.endswith("_dpp") or "quad_perm" in mods or "row_" in mods
            return
        raise ValueError("unknown instr " + text)

def isv(x): return x[0] in ("v", "a")

def need_states(p, c):
    n = 0
    pv = p.kind in ("valu", "trans")
    cv = c.kind in ("valu", "trans")
    pwv = {x for x in p.w if isv(x)}
    pws = {x for x in p.w if not isv(x)}
    if pv:
        if c.kind == "mfma" and pwv & c.r: n = max(n, 2)
        if cv and getattr(c, "isdpp", False) and pwv & c.r: n = max(n, 2)
        if cv and c.base.startswith("v_permlane") and pwv & c.r: n = max(n, 2)
        if cv and c.base in ("v_readlane_b32", "v_readfirstlane_b32") and pwv & c.r: n = max(n, 1)
        if p.kind == "trans" and c.kind in ("valu",) and pwv & c.r: n = max(n, 1)
        if pws:
            if c.kind == "vmem" and pws & c.r: n = max(n, 5)
            if cv and pws & c.r: n = max(n, 2)
            if cv and c.base in ("v_readlane_b32", "v_writelane_b32") and pws & c.r: n = max(n, 4)
            if c.kind in ("salu", "smem") and pws & c.r: n = max(n, 4)
            if ("s", "exec") in pws and c.kind == "mfma": n = max(n, 4)
            if ("s", "exec") in pws and cv and (getattr(c, "isdpp", False)): n = max(n, 5)
            if ("s", "exec") in pws and cv and (c.base.startswith("v_permlane") or "readlane" in c.base or "readfirstlane" in c.base): n = max(n, 4)
        if ("sdwa" in p.op or "op_sel" in getattr(p, "mods", "")) and cv and pwv & (c.r | c.w): n = max(n, 1)
    if p.kind == "salu" and ("s", "m0") in p.w and c.kind == "vmem" and getattr(c, "islds", False): n = max(n, 1)
    if p.kind == "vmem" and p.storedata and p.storedata & c.w:
        n = max(n, 2 if cv else 1)
    if p.kind == "mfma":
        big = 12 if p.passes == 8 else 8
        if c.kind == "mfma":
            if p.w & c.srcAB: n = max(n, big)
            if p.w & c.srcC:
                if not (p.w == c.srcC and p.passes == c.passes): n = max(n, 10 if p.passes == 8 else 6)
            elif p.w & c.w and not (p.w & c.srcC):
                pass
        elif cv or c.kind in ("ds", "vmem"):
            if p.w & (c.r | c.w): n = max(n, big)
        if cv and p.srcC & c.w: n = max(n, 7 if p.passes == 8 else 3)
    return n

def states(i):
    if i.label or i.directive or i.empty: return 0
    if i.kind == "nop": return i.n
    return 1

def pad_hazards(lines, fix=True, window=24):
    out = []
    viol = []
    for text in lines:
        c = Ins(text)
        if not (c.label or c.directive or c.empty) and c.kind != "nop":
            dist = 0; need = 0
            for p in reversed(out[-window*2:]):
                if p.label or p.directive or p.empty: continue
                if p.kind != "nop":
                    ns = need_states(p, c)
                    if ns > dist: need = max(need, ns - dist)
                dist += states(p)
                if dist >= window: break
            if need > 0:
                viol.append((text, need))
                if fix:
                    while need > 0:
                        k = min(need, 16)
                        out.append(Ins(f"s_nop {k-1}")); need -= k
        out.append(c)
    return [i.text for i in out], viol

class Asm:
    def __init__(self):
        self.lines = []
    def __call__(self, *ts):
        for t in ts:
            for l in t.split("\n"):
                self.lines.append(l.strip())
    def label(self, n): self.lines.append(n + ":")
    def c(self, t): self.lines.append("; " + t)

def check_loop(lines, name):
    _, viol = pad_hazards(lines + lines, fix=False)
    if viol: raise RuntimeError(f"loop {name} hazards: {viol[:5]}")

def kernel_text(name, lines, nv, ns=102, nacc=0, accum=None):
    acc_off = accum if accum is not None else ((nv + 3) // 4) * 4
    total = acc_off + nacc if nacc else nv
    body = "\n".join(("" if (l.endswith(":") or l.startswith(".")) else "  ") + l for l in lines)
    code = f""".text
.globl {name}
.p2align 8
.type {name},@function
{name}:
{body}
"""
    desc = f""".amdhsa_kernel {name}
  .amdhsa_next_free_vgpr {total}
  .amdhsa_next_free_sgpr {ns}
  .amdhsa_accum_offset {acc_off}
  .amdhsa_group_segment_fixed_size 0
  .amdhsa_kernarg_size 72
  .amdhsa_user_sgpr_count 2
  .amdhsa_user_sgpr_kernarg_segment_ptr 1
  .amdhsa_system_sgpr_workgroup_id_x 1
  .amdhsa_float_denorm_mode_32 3
.end_amdhsa_kernel
"""
    return code, desc

import os
STAMPS = bool(int(os.environ.get("STAMPS", "0")))
DBG_OFF = 0x1300000
def stamp(A, i, real=False):
    if not STAMPS: return
    A(f"{'s_memrealtime' if real else 's_memtime'} s[{64+2*i}:{65+2*i}]")
def stamp_flush(A, kidx, srd="s[12:15]", wave="s16", vt=10):
    if not STAMPS: return
    A("s_memrealtime s[78:79]")
    A("s_waitcnt lgkmcnt(0)")
    A(f"s_lshl_b32 s80, s2, 4")
    A(f"s_add_u32 s80, s80, {wave}")
    A(f"s_lshl_b32 s80, s80, 5")
    A(f"s_add_u32 s80, s80, {DBG_OFF + kidx*256*16*32}")
    for i in range(8): A(f"v_mov_b32 v{vt+i}, s{64+2*i}")
    A(f"v_mov_b32 v{vt+8}, 0")
    A(f"buffer_store_dwordx4 v[{vt}:{vt+3}], v{vt+8}, {srd}, s80 offen")
    A(f"buffer_store_dwordx4 v[{vt+4}:{vt+7}], v{vt+8}, {srd}, s80 offen offset:16")
```

```python
from asmlib import *
from layout import *
import math, struct

def f2i(x): return struct.unpack("<I", struct.pack("<f", x))[0]

class Lgkm:
    def __init__(self, A): self.A = A; self.q = []
    def issue(self, tag, text): self.A(text); self.q.append(tag)
    def wait(self, tag):
        idx = [i for i, t in enumerate(self.q) if t == tag]
        if not idx: return
        last = idx[-1]
        n = len(self.q) - 1 - last
        assert n <= 15
        self.A(f"s_waitcnt lgkmcnt({n})")
        self.q = self.q[last+1:]

SLOT = 49152
VL = 1
VW = 2
VX = 6
XA0, XA1, WG, WC = 8, 9, 10, 11
T0 = 12
XF = 20
WF = 36
ACC = 52
NV = 132

def main_loop(A, name, frags):
    n = len(frags)
    A.label(f"{name}_loop")
    start = len(A.lines)
    A("s_cmp_eq_u32 s20, 9")
    A(f"s_cbranch_scc1 {name}_w0")
    A("s_waitcnt vmcnt(6)")
    A(f"s_branch {name}_w1")
    A.label(f"{name}_w0")
    A("s_waitcnt vmcnt(0)")
    A.label(f"{name}_w1")
    A("s_barrier")
    if STAMPS:
        A("s_cmp_lg_u32 s20, 0"); A(f"s_cbranch_scc1 {name}_st"); stamp(A, 3); A("s_waitcnt lgkmcnt(0)"); A.label(f"{name}_st")
    L = Lgkm(A)
    def rdW(f):
        ks, j = divmod(f, n)
        ar, cb, _, _ = frags[j]
        r = WF + 4 * (f % 4)
        L.issue(("W", f), f"ds_read_b64_tr_b16 {v(r,2)}, {v(ar)} offset:{ks*15360 + cb}")
        L.issue(("W", f), f"ds_read_b64_tr_b16 {v(r+2,2)}, {v(ar)} offset:{ks*15360 + 7680 + cb}")
    def rdX(ks):
        ar = XA0 if ks == 0 else XA1
        L.issue(("X", ks), f"ds_read_b128 {v(XF+8*ks,4)}, {v(ar)} offset:32768")
        L.issue(("X", ks), f"ds_read_b128 {v(XF+8*ks+4,4)}, {v(ar)} offset:{32768+512}")
    rdX(0); rdW(0); rdW(1); rdW(2); rdX(1)
    dma_at = {1: 0, 3: 1} if n == 5 else {2: 0, 6: 1}
    for f in range(2 * n):
        ks, j = divmod(f, n)
        if f + 3 < 2 * n:
            pass
        if j == 0: L.wait(("X", ks))
        L.wait(("W", f))
        _, _, ai, wA = frags[j]
        r = WF + 4 * (f % 4)
        for t in range(2):
            d = ACC + 4 * (2 * ai + t)
            x = XF + 8 * ks + 4 * t
            if wA: A(f"v_mfma_f32_16x16x32_bf16 {v(d,4)}, {v(r,4)}, {v(x,4)}, {v(d,4)}")
            else:  A(f"v_mfma_f32_16x16x32_bf16 {v(d,4)}, {v(x,4)}, {v(r,4)}, {v(d,4)}")
        if f + 3 < 2 * n: rdW(f + 3)
        if f in dma_at:
            g = dma_at[f]
            A("s_cmp_ge_u32 s20, 8")
            A(f"s_cbranch_scc1 {name}_nd{g}")
            if g == 0:
                A("s_add_u32 m0, s23, s25")
                A("s_nop 0")
                for t in range(4):
                    A(f"buffer_load_dwordx4 {v(VW+t)}, s[8:11], s21 offen offset:{1024*t} lds")
            else:
                A("s_add_u32 m0, s23, s26")
                A("s_nop 0")
                for t in range(2):
                    A(f"buffer_load_dwordx4 {v(VX+t)}, s[4:7], s22 offen offset:{1024*t} lds")
            A.label(f"{name}_nd{g}")
    A("s_add_u32 s21, s21, 245760")
    A("s_add_u32 s22, s22, 128")
    A(f"s_add_u32 s23, s23, {SLOT}")
    A(f"s_cmp_eq_u32 s23, {3*SLOT}")
    A("s_cselect_b32 s23, 0, s23")
    A(f"s_add_u32 s24, s24, {SLOT}")
    A(f"s_cmp_eq_u32 s24, {3*SLOT}")
    A(f"s_cselect_b32 s27, s28, s29")
    A("s_cselect_b32 s24, 0, s24")
    for r in (XA0, XA1, WG, WC):
        A(f"v_add_u32 {v(r)}, s27, {v(r)}")
    A("s_add_u32 s20, s20, 1")
    A("s_cmp_lt_u32 s20, 10")
    A(f"s_cbranch_scc1 {name}_loop")
    return A.lines[start:]

def phi(A, regs, tmp):
    for r, t in zip(regs, tmp):
        A(f"v_mul_f32 {v(t)}, s30, {v(r)}")
    for r, t in zip(regs, tmp):
        A(f"v_min_f32 {v(t)}, 0, {v(t)}")
    for r, t in zip(regs, tmp):
        A(f"v_exp_f32 {v(t)}, {v(t)}")
    for r, t in zip(regs, tmp):
        A(f"v_max_f32 {v(r)}, 0, {v(r)}")
    for r, t in zip(regs, tmp):
        A(f"v_add_f32 {v(r)}, {v(r)}, {v(t)}")
    for r, t in zip(regs, tmp):
        A(f"v_add_f32 {v(r)}, s31, {v(r)}")

def gen_k1():
    A = Asm()
    A("s_cmp_ge_u32 s2, 256")
    A("s_cbranch_scc1 k1_end")
    stamp(A, 0, True); stamp(A, 1)
    A("s_load_dwordx4 s[32:35], s[0:1], 0")
    A("s_load_dwordx4 s[36:39], s[0:1], 24")
    A("s_load_dwordx2 s[12:13], s[0:1], 64")
    A(f"v_and_b32 {v(VL)}, 63, v0")
    A("v_lshrrev_b32 v12, 6, v0")
    A("s_nop 0")
    A("v_readfirstlane_b32 s16, v12")
    A("s_and_b32 s3, s2, 7")
    A("s_lshr_b32 s40, s2, 3")
    A("s_lshr_b32 s17, s3, 2")
    A("s_and_b32 s18, s3, 1")
    A("s_lshl_b32 s18, s18, 3")
    A("s_and_b32 s41, s40, 7")
    A("s_add_u32 s18, s18, s41")
    A("s_bfe_u32 s19, s3, 0x10001")
    A("s_lshl_b32 s19, s19, 2")
    A("s_lshr_b32 s41, s40, 3")
    A("s_add_u32 s19, s19, s41")
    A("s_lshl_b32 s42, s16, 8")
    A("s_mul_i32 s43, s19, 160")
    A("s_mov_b32 s44, 0x8889")
    A("s_mov_b32 s45, 0x199a")
    for t in range(4):
        u, rho, cu, seg, k, tmp = 12, 13, 14, 15, 16, 17
        A(f"v_add_u32 v{u}, s42, {v(VL)}")
        if t: A(f"v_add_u32 v{u}, {64*t}, v{u}")
        A(f"v_mul_u32_u24 v{rho}, s44, v{u}")
        A(f"v_lshrrev_b32 v{rho}, 20, v{rho}")
        A(f"v_mul_u32_u24 v{tmp}, 30, v{rho}")
        A(f"v_sub_u32 v{cu}, v{u}, v{tmp}")
        A(f"v_mul_u32_u24 v{seg}, s45, v{cu}")
        A(f"v_lshrrev_b32 v{seg}, 16, v{seg}")
        A(f"v_mul_u32_u24 v{tmp}, 10, v{seg}")
        A(f"v_sub_u32 v{cu}, v{cu}, v{tmp}")
        A(f"v_and_b32 v{k}, 35, v{rho}")
        A(f"v_bfe_u32 v{tmp}, v{rho}, 2, 2")
        A(f"v_lshl_add_u32 v{k}, v{tmp}, 3, v{k}")
        A(f"v_bfe_u32 v{tmp}, v{rho}, 4, 1")
        A(f"v_lshl_add_u32 v{k}, v{tmp}, 2, v{k}")
        A(f"v_mul_u32_u24 v{k}, 3840, v{k}")
        A(f"v_mul_u32_u24 v{seg}, 1280, v{seg}")
        A(f"v_lshl_add_u32 v{k}, v{cu}, 4, v{k}")
        A(f"v_add3_u32 v{k}, v{k}, v{seg}, s43")
        if t: A(f"v_subrev_u32 v{k}, {1024*t}, v{k}")
        A(f"v_cmp_gt_u32 vcc, 1920, v{u}")
        A(f"v_mov_b32 v{tmp}, 0x7f000000")
        A(f"v_cndmask_b32 {v(VW+t)}, v{tmp}, v{k}, vcc")
    A("s_lshl_b32 s42, s18, 7")
    A("s_lshl_b32 s46, s16, 4")
    A("s_add_u32 s42, s42, s46")
    A("s_and_b32 s46, s16, 1")
    A("s_lshl_b32 s46, s46, 2")
    A(f"v_lshrrev_b32 v12, 3, {v(VL)}")
    A(f"v_add_u32 v12, s42, v12")
    A(f"v_mul_u32_u24 v12, 1280, v12")
    A(f"v_bfe_u32 v13, {v(VL)}, 4, 1")
    A(f"v_or_b32 v13, s46, v13")
    A(f"v_and_b32 v14, 7, {v(VL)}")
    A(f"v_xor_b32 v13, v13, v14")
    A(f"v_lshl_add_u32 {v(VX)}, v13, 4, v12")
    A(f"v_xor_b32 v13, 2, v13")
    A(f"v_lshl_add_u32 {v(VX+1)}, v13, 4, v12")
    A(f"v_add_u32 {v(VX+1)}, {8*1280-1024}, {v(VX+1)}")
    A("s_waitcnt lgkmcnt(0)")
    A("s_cmp_eq_u32 s17, 0")
    A("s_cselect_b32 s4, s32, s36")
    A("s_cselect_b32 s5, s33, s37")
    A("s_cselect_b32 s8, s34, s38")
    A("s_cselect_b32 s9, s35, s39")
    A(f"s_mov_b32 s6, {2048*640*2}")
    A("s_mov_b32 s7, 0x20000")
    A(f"s_mov_b32 s10, {640*1920*2}")
    A("s_mov_b32 s11, 0x20000")
    A(f"s_mov_b32 s14, {WS_SIZE}")
    A("s_mov_b32 s15, 0x20000")
    A("s_lshl_b32 s25, s16, 12")
    A("s_lshl_b32 s26, s16, 11")
    A("s_add_u32 s26, s26, 32768")
    A("s_mov_b32 s21, 0")
    A("s_mov_b32 s22, 0")
    for st in range(2):
        A(f"s_add_u32 m0, s25, {st*SLOT}")
        A("s_nop 0")
        for t in range(4):
            A(f"buffer_load_dwordx4 {v(VW+t)}, s[8:11], s21 offen offset:{1024*t} lds")
        A(f"s_add_u32 m0, s26, {st*SLOT}")
        A("s_nop 0")
        for t in range(2):
            A(f"buffer_load_dwordx4 {v(VX+t)}, s[4:7], s22 offen offset:{1024*t} lds")
        A("s_add_u32 s21, s21, 245760")
        A("s_add_u32 s22, s22, 128")
    A(f"s_mov_b32 s23, {2*SLOT}")
    A("s_mov_b32 s24, 0")
    A(f"s_mov_b32 s28, {(-2*SLOT) & 0xffffffff}")
    A(f"s_mov_b32 s29, {SLOT}")
    A("s_mov_b32 s20, 0")
    A("s_and_b32 s47, s16, 3")
    I, GQ = 12, 13
    A(f"v_and_b32 v{I}, 15, {v(VL)}")
    A(f"v_lshrrev_b32 v{GQ}, 4, {v(VL)}")
    A(f"v_lshrrev_b32 v14, 2, v{I}")
    A(f"v_and_b32 v15, 3, v{I}")
    A(f"v_lshl_add_u32 v16, v14, 3, v15")
    A(f"v_bfe_u32 v17, v{I}, 1, 1")
    A(f"v_lshl_add_u32 v17, v14, 1, v17")
    A(f"v_xor_b32 v17, v17, v{GQ}")
    A(f"v_lshlrev_b32 v17, 4, v17")
    A(f"v_lshl_add_u32 v17, v16, 7, v17")
    A("s_lshl_b32 s46, s47, 12")
    A(f"v_add_u32 {v(XA0)}, s46, v17")
    A(f"v_xor_b32 {v(XA1)}, 64, {v(XA0)}")
    A(f"v_lshrrev_b32 v17, 2, {v(VL)}")
    A(f"v_mul_u32_u24 v17, 480, v17")
    A(f"v_mul_u32_u24 v18, 40, v15")
    A(f"v_add_u32 {v(WG)}, v17, v18")
    A(f"v_lshl_add_u32 {v(WC)}, v15, 3, v17")
    for r in range(ACC, ACC + 80):
        A(f"v_mov_b32 {v(r)}, 0")
    A(f"s_mov_b32 s30, {f2i(math.log2(math.e))}")
    A(f"s_mov_b32 s31, {f2i(1e-6)}")
    A("s_lshl_b32 s48, s18, 2")
    A("s_add_u32 s48, s48, s47")
    stamp(A, 2)
    A("s_cmp_lt_u32 s16, 4")
    A("s_cbranch_scc1 k1_q")
    A("s_cmp_eq_u32 s17, 0")
    A("s_cbranch_scc0 k1_kvb")

    def lane_helpers():
        stamp(A, 4)
        A(f"v_and_b32 v{I}, 15, {v(VL)}")
        A(f"v_lshrrev_b32 v{GQ}, 4, {v(VL)}")
        A(f"v_lshrrev_b32 v14, 2, v{I}")
        A(f"v_and_b32 v15, 3, v{I}")
        A(f"v_lshl_add_u32 v16, v14, 3, v15")
    acc = lambda ai, t, r=0: ACC + 4 * (2 * ai + t) + r

    fr = [(WG, 160 + 8 * sidx, sidx, True) for sidx in range(5)] + \
         [(WC, 320 + 40 * sidx, 5 + sidx, False) for sidx in range(4)] + [(WG, 320 + 32, 9, False)]
    body = main_loop(A, "k1_kva", fr); check_loop(body, "kva")
    lane_helpers()
    A("s_lshl_b32 s40, s19, 8")
    A("s_add_u32 s40, s40, s48")
    A(f"s_mul_i32 s41, s40, {KVREC}")
    A(f"s_add_u32 s41, s41, {KV_OFF}")
    A(f"s_mov_b32 s42, {64*KVREC}")
    A(f"v_mul_lo_u32 v17, s42, v{GQ}")
    A(f"v_lshl_add_u32 v18, v16, 4, v17")
    A(f"v_lshl_add_u32 v19, v16, 3, v17")
    A("s_nop 4")
    P = XF
    for t in range(2):
        n2 = 40 + t
        A(f"v_mul_f32 v{n2}, {v(acc(0,t,0))}, {v(acc(0,t,0))}")
        for sidx in range(5):
            for r in range(4):
                if sidx == 0 and r == 0: continue
                A(f"v_fmac_f32 v{n2}, {v(acc(sidx,t,r))}, {v(acc(sidx,t,r))}")
        b = P + 10 * t
        for sidx in range(5):
            A(f"v_cvt_pk_bf16_f32 v{b+2*sidx}, {v(acc(sidx,t,0))}, {v(acc(sidx,t,1))}")
            A(f"v_cvt_pk_bf16_f32 v{b+2*sidx+1}, {v(acc(sidx,t,2))}, {v(acc(sidx,t,3))}")
        A(f"buffer_store_dwordx4 {v(b,4)}, v18, s[12:15], s41 offen offset:{64*t}")
        A(f"buffer_store_dwordx4 {v(b+4,4)}, v18, s[12:15], s41 offen offset:{512+64*t}")
        A(f"buffer_store_dwordx2 {v(b+8,2)}, v19, s[12:15], s41 offen offset:{1024+32*t}")
    A("v_max_f32 v40, v40, v41")
    for ror in (8, 4, 2, 1):
        A(f"v_max_f32_dpp v40, v40, v40 row_ror:{ror} row_mask:0xf bank_mask:0xf")
    A(f"v_lshlrev_b32 v41, 8, v{GQ}")
    A("s_lshl_b32 s43, s40, 2")
    A(f"s_add_u32 s43, s43, {KN_OFF}")
    A("buffer_store_dword v40, v41, s[12:15], s43 offen")
    A(f"v_mul_u32_u24 v17, 336, v{GQ}")
    A(f"v_lshl_add_u32 v18, v{I}, 4, v17")
    A(f"v_mul_lo_u32 v19, s42, v14")
    A(f"v_lshl_add_u32 v19, v15, 4, v19")
    A(f"v_add_u32 v19, v19, v17")
    A(f"v_mul_lo_u32 v42, s42, v15")
    A(f"v_add_u32 v42, v42, v17")
    for r in range(44, 48): A(f"v_mov_b32 v{r}, 0x3f803f80")
    A(f"buffer_store_dwordx4 v[44:47], v42, s[12:15], s41 offen offset:{1280+320}")
    for sidx in range(5):
        b = ACC + 4 * sidx
        for t in range(2):
            A(f"v_cvt_pk_bf16_f32 v{b+2*t}, {v(acc(5+sidx,t,0))}, {v(acc(5+sidx,t,1))}")
            A(f"v_cvt_pk_bf16_f32 v{b+2*t+1}, {v(acc(5+sidx,t,2))}, {v(acc(5+sidx,t,3))}")
        if sidx < 4:
            A(f"buffer_store_dwordx4 {v(b,4)}, v18, s[12:15], s41 offen offset:1280")
            A("s_add_u32 s41, s41, s42")
        else:
            A("s_lshl_b32 s43, s42, 2")
            A("s_sub_u32 s41, s41, s43")
            A(f"buffer_store_dwordx4 {v(b,4)}, v19, s[12:15], s41 offen offset:{1280+256}")
    stamp(A, 5)
    if STAMPS: A("s_waitcnt vmcnt(0)")
    stamp(A, 6); stamp_flush(A, 0)
    A("s_endpgm")

    A.label("k1_q")
    fr = [(WG, 8 * sidx, sidx, True) for sidx in range(5)]
    body = main_loop(A, "k1_q", fr); check_loop(body, "q")
    lane_helpers()
    A("s_lshl_b32 s40, s19, 8")
    A("s_add_u32 s40, s40, s48")
    A(f"s_mul_i32 s41, s40, {QREC}")
    A(f"s_mul_i32 s43, s17, {QB_OFF}")
    A(f"s_add_u32 s41, s41, s43")
    A(f"s_mov_b32 s42, {64*QREC}")
    A(f"v_mul_lo_u32 v17, s42, v{GQ}")
    A(f"v_lshl_add_u32 v18, v16, 4, v17")
    A("s_cmp_eq_u32 s17, 0")
    A("s_cbranch_scc0 k1_qb")
    A(f"s_mov_b32 s44, {f2i(math.log2(math.e)/math.sqrt(20))}")
    for r in range(ACC, ACC + 40): A(f"v_mul_f32 v{r}, s44, v{r}")
    A("s_branch k1_qs")
    A.label("k1_qb")
    phi(A, list(range(ACC, ACC + 40)), list(range(ACC + 40, ACC + 80)))
    A.label("k1_qs")
    for t in range(2):
        b = P + 12 * t
        n2 = b + 10
        A(f"v_mul_f32 v{n2}, {v(acc(0,t,0))}, {v(acc(0,t,0))}")
        for sidx in range(5):
            for r in range(4):
                if sidx == 0 and r == 0: continue
                A(f"v_fmac_f32 v{n2}, {v(acc(sidx,t,r))}, {v(acc(sidx,t,r))}")
        A(f"v_mov_b32 v{b+11}, 0")
        for sidx in range(5):
            A(f"v_cvt_pk_bf16_f32 v{b+2*sidx}, {v(acc(sidx,t,0))}, {v(acc(sidx,t,1))}")
            A(f"v_cvt_pk_bf16_f32 v{b+2*sidx+1}, {v(acc(sidx,t,2))}, {v(acc(sidx,t,3))}")
        for g in range(3):
            A(f"buffer_store_dwordx4 {v(b+4*g,4)}, v18, s[12:15], s41 offen offset:{512*g+64*t}")
    stamp(A, 5)
    if STAMPS: A("s_waitcnt vmcnt(0)")
    stamp(A, 6); stamp_flush(A, 0)
    A("s_endpgm")

    A.label("k1_kvb")
    fr = [(WC, 160 + 40 * sidx, sidx, False) for sidx in range(4)] + [(WG, 160 + 32, 4, False)] + \
         [(WC, 320 + 40 * sidx, 5 + sidx, False) for sidx in range(4)] + [(WG, 320 + 32, 9, False)]
    body = main_loop(A, "k1_kvb", fr); check_loop(body, "kvb")
    lane_helpers()
    VV = 20
    for sidx in range(5):
        for t in range(2):
            A(f"v_cvt_pk_bf16_f32 v{VV+4*sidx+2*t}, {v(acc(5+sidx,t,0))}, {v(acc(5+sidx,t,1))}")
            A(f"v_cvt_pk_bf16_f32 v{VV+4*sidx+2*t+1}, {v(acc(5+sidx,t,2))}, {v(acc(5+sidx,t,3))}")
    phi(A, list(range(ACC, ACC + 40)), list(range(ACC + 40, ACC + 80)))
    PK = ACC + 40
    for sidx in range(5):
        for t in range(2):
            A(f"v_cvt_pk_bf16_f32 v{PK+4*sidx+2*t}, {v(acc(sidx,t,0))}, {v(acc(sidx,t,1))}")
            A(f"v_cvt_pk_bf16_f32 v{PK+4*sidx+2*t+1}, {v(acc(sidx,t,2))}, {v(acc(sidx,t,3))}")
    ON = 40
    for r in range(ON, ON + 4): A(f"v_mov_b32 v{r}, 0x3f803f80")
    A(f"s_mul_i32 s40, s47, 6720")
    A(f"s_add_u32 s40, s40, {SLOT}")
    A(f"v_mul_u32_u24 v17, 80, v{I}")
    A(f"v_lshl_add_u32 v17, v{GQ}, 4, v17")
    A(f"v_add_u32 v17, s40, v17")
    A(f"v_mul_u32_u24 v18, 80, v15")
    A(f"v_mul_u32_u24 v19, 1680, v{GQ}")
    A(f"v_add3_u32 v19, v19, v18, s40")
    A(f"v_lshl_add_u32 v18, v{GQ}, 4, v18")
    A(f"v_add_u32 v18, s40, v18")
    dpool = [ACC + 4 * i for i in range(10)] + [112 + 4 * i for i in range(5)] + [44, 48, 2]
    jobs = []
    for h in range(4): jobs.append((PK + 4 * h, VV + 4 * h, 17, h * 1680, None))
    for h in range(4): jobs.append((PK + 4 * h, VV + 16, 18, h * 1680 + 1280, 0x000f000f000f000f << (4 * h)))
    for h in range(4): jobs.append((PK + 16, VV + 4 * h, 17, h * 1680 + 64 - 16 * h, 0xffff << (16 * h)))
    jobs.append((PK + 16, VV + 16, 19, 1280 + 64, 0xf0000f0000f0000f))
    for h in range(4): jobs.append((PK + 4 * h, ON, 17, h * 1680 + 1600, 0x0001000100010001))
    jobs.append((PK + 16, ON, 19, 1600 + 64, 0x0001000100010001))
    for d, (pa, pb, ar, off, m) in zip(dpool, jobs):
        A(f"v_mfma_f32_16x16x32_bf16 {v(d,4)}, {v(pa,4)}, {v(pb,4)}, 0")
    cur = None
    for d, (pa, pb, ar, off, m) in zip(dpool, jobs):
        if m != cur:
            if m is None: A("s_mov_b64 exec, -1")
            else:
                A(f"s_mov_b32 exec_lo, {m & 0xffffffff}")
                A(f"s_mov_b32 exec_hi, {m >> 32}")
            cur = m
        A(f"ds_write_b128 v{ar}, {v(d,4)} offset:{off}")
    A("s_mov_b64 exec, -1")
    A("s_waitcnt lgkmcnt(0)")
    A("s_barrier")
    A("v_subrev_u32 v12, 256, v0")
    A("s_mov_b32 s44, 0x271")
    A("s_lshl_b32 s40, s19, 6")
    A("s_add_u32 s40, s40, s18")
    A(f"s_mul_i32 s41, s40, 1680")
    A(f"s_add_u32 s41, s41, {KVP_OFF}")
    for rnd in range(2):
        if rnd: A("v_add_u32 v12, 256, v12")
        b = ACC + 16 * rnd
        A(f"v_min_u32 v13, 419, v12")
        A(f"v_lshlrev_b32 v13, 4, v13")
        A(f"v_add_u32 v13, {SLOT}, v13")
        for wv in range(4):
            A(f"ds_read_b128 {v(b+4*wv,4)}, v13 offset:{6720*wv}")
        A(f"v_mul_u32_u24 v14, s44, v12")
        A(f"v_lshrrev_b32 v14, 16, v14")
        A(f"v_mul_u32_u24 v15, {16*1680-1680}, v14")
        A(f"v_lshl_add_u32 v15, v12, 4, v15")
        A(f"v_mov_b32 v16, 0x7f000000")
        A(f"v_cmp_gt_u32 vcc, 420, v12")
        A(f"v_cndmask_b32 v{18+rnd}, v16, v15, vcc")
        A("s_waitcnt lgkmcnt(0)")
        for r in range(4):
            A(f"v_add_f32 v{b+r}, v{b+r}, v{b+4+r}")
            A(f"v_add_f32 v{b+8+r}, v{b+8+r}, v{b+12+r}")
        for r in range(4):
            A(f"v_add_f32 v{b+r}, v{b+r}, v{b+8+r}")
        A(f"buffer_store_dwordx4 {v(b,4)}, v{18+rnd}, s[12:15], s41 offen")
    stamp(A, 5)
    if STAMPS: A("s_waitcnt vmcnt(0)")
    stamp(A, 6); stamp_flush(A, 0)
    A.label("k1_end")
    A("s_endpgm")
    lines, viol = pad_hazards(A.lines)
    return lines, NV, 3 * SLOT
```

```python
from asmlib import *
from layout import *
import math, struct
def f2i(x): return struct.unpack("<I", struct.pack("<f", x))[0]

CH = 8 * KVREC + 448
IMG = 3 * CH
LDS = IMG + 1536
VL = 1
KAA, KBA, VA = 2, 3, 4
DV = 5
IDX = 6
OA = 7
Q1, Q2 = 12, 16
KA, KB, V1, V2 = 20, 24, 28, 32
O = 36
S0, S1 = 52, 68
T = 84
NV = 128

def norm_store(A, o, tmp, eps, soff):
    l, l2 = tmp, tmp + 1
    A(f"v_mov_b32 v{l}, v{o+8}")
    A(f"v_mov_b32 v{l2}, v{o+8}")
    A(f"v_permlane32_swap_b32 v{l}, v{l2}")
    if eps: A(f"v_add_f32 v{l2}, {eps}, v{l2}")
    return l2

def finish_store(A, o, l2, tmp, soff):
    A(f"v_rcp_f32 v{l2}, v{l2}")
    for r in range(12): A(f"v_mul_f32 v{o+r}, v{o+r}, v{l2}")
    p = tmp + 2
    for g in range(3):
        A(f"v_cvt_pk_bf16_f32 v{p+2*g}, v{o+4*g}, v{o+4*g+1}")
        A(f"v_cvt_pk_bf16_f32 v{p+2*g+1}, v{o+4*g+2}, v{o+4*g+3}")
    A(f"v_permlane32_swap_b32 v{p}, v{p+2}")
    A(f"v_permlane32_swap_b32 v{p+1}, v{p+3}")
    A(f"buffer_store_dwordx4 {v(p,4)}, v{OA}, s[12:15], {soff} offen")
    A(f"buffer_store_dwordx2 {v(p+4,2)}, v{OA+1}, s[12:15], {soff} offen offset:32")

def negm_pack(A, dst, m, t1):
    A(f"v_and_b32 v{t1}, s30, v{m}")
    A(f"v_sub_f32 v{m}, v{t1}, v{m}")
    A(f"v_xor_b32 v{t1}, 0x80000000, v{t1}")
    A(f"v_perm_b32 v{dst}, v{m}, v{t1}, s31")

def gen_k2():
    A = Asm()
    A("s_cmp_ge_u32 s2, 256")
    A("s_cbranch_scc1 k2_end")
    stamp(A, 0, True); stamp(A, 1)
    A("s_load_dwordx2 s[12:13], s[0:1], 64")
    A(f"v_and_b32 v{VL}, 63, v0")
    A("v_lshrrev_b32 v84, 6, v0")
    A("s_nop 0")
    A("v_readfirstlane_b32 s16, v84")
    A("s_and_b32 s3, s2, 7")
    A("s_lshr_b32 s4, s2, 3")
    A("s_and_b32 s5, s4, 3")
    A("s_lshl_b32 s17, s3, 2")
    A("s_add_u32 s17, s17, s5")
    A("s_lshr_b32 s18, s4, 2")
    A("s_lshl_b32 s19, s18, 3")
    A("s_add_u32 s19, s19, s16")
    A(f"s_mov_b32 s14, {WS_SIZE}")
    A("s_mov_b32 s15, 0x20000")
    A("s_lshl_b32 s5, s17, 6")
    A("s_add_u32 s6, s5, s19")
    A(f"s_mul_i32 s20, s6, {QREC}")
    A(f"s_add_u32 s21, s20, {QB_OFF}")
    A("s_add_u32 s6, s5, s16")
    A(f"s_mul_i32 s22, s6, {KVREC}")
    A(f"s_add_u32 s22, s22, {KV_OFF}")
    A(f"s_mul_i32 s28, s5, {KVREC}")
    A(f"s_add_u32 s28, s28, {KV_OFF}")
    A("s_lshl_b32 s23, s5, 2")
    A(f"s_add_u32 s23, s23, {KN_OFF}")
    A(f"s_mul_i32 s24, s17, {16*1680}")
    A(f"s_add_u32 s24, s24, {KVP_OFF}")
    A(f"s_mul_i32 s25, s16, {KVREC}")
    L31, HH = 84, 85
    A(f"v_and_b32 v{L31}, 31, v{VL}")
    A(f"v_lshrrev_b32 v{HH}, 5, v{VL}")
    A(f"v_lshlrev_b32 v{DV}, 4, v{VL}")
    A(f"v_mov_b32 v{KAA}, v{DV}")
    A(f"v_lshlrev_b32 v{KBA}, 3, v{L31}")
    A(f"v_mul_u32_u24 v{VA}, 336, v{HH}")
    A(f"v_lshl_add_u32 v{VA}, v{L31}, 4, v{VA}")
    A(f"v_mov_b32 v86, 0x7f000000")
    A(f"v_cmp_gt_u32 vcc, 32, v{VL}")
    A(f"v_cndmask_b32 v87, v86, v{DV}, vcc")
    A("s_lshl_b32 s6, s19, 5")
    A(f"v_add_u32 v88, s6, v{L31}")
    A(f"v_mul_u32_u24 v88, 1280, v88")
    A("s_mul_i32 s6, s17, 40")
    A(f"v_add_u32 v88, s6, v88")
    A(f"v_cndmask_b32 v{OA+1}, v86, v88, vcc")
    A(f"v_lshl_add_u32 v{OA}, v{HH}, 4, v88")
    A("s_lshl_b32 s6, s16, 4")
    A(f"v_lshrrev_b32 v89, 2, v{VL}")
    A(f"v_add_u32 v89, s6, v89")
    A(f"v_min_u32 v89, 104, v89")
    A(f"v_and_b32 v90, 3, v{VL}")
    A(f"v_mul_u32_u24 v90, {4*1680}, v90")
    A(f"v_lshl_add_u32 v90, v89, 4, v90")
    A(f"v_lshlrev_b32 v91, 2, v{VL}")
    A("s_waitcnt lgkmcnt(0)")
    KP = 96
    A("s_add_u32 s29, s24, 3360")
    for t in range(4):
        A(f"buffer_load_dwordx4 {v(KP+4*t,4)}, v90, s[12:15], {'s24' if t < 2 else 's29'} offen offset:{1680*(t&1)}")
    def dma(slot_expr_lines):
        for l in slot_expr_lines: A(l)
        A("s_nop 0")
        for t in range(3):
            A(f"buffer_load_dwordx4 v{DV}, s[12:15], s22 offen offset:{1024*t} lds")
        A(f"s_add_u32 s22, s22, {8*KVREC}")
    dma(["s_mov_b32 m0, s25"])
    A(f"buffer_load_dwordx4 {v(Q1,4)}, v{DV}, s[12:15], s20 offen")
    A(f"buffer_load_dwordx4 {v(Q2,4)}, v87, s[12:15], s20 offen offset:1024")
    A(f"buffer_load_dword v92, v91, s[12:15], s23 offen")
    PQ1, PQ2 = 112, 116
    A(f"buffer_load_dwordx4 {v(PQ1,4)}, v{DV}, s[12:15], s21 offen")
    A(f"buffer_load_dwordx4 {v(PQ2,4)}, v87, s[12:15], s21 offen offset:1024")
    dma([f"s_add_u32 m0, s25, {CH}"])
    stamp(A, 2)
    A("s_mov_b32 s30, 0xffff0000")
    A("s_mov_b32 s31, 0x07060302")
    A(f"v_mov_b32 v{IDX}, 0xdddddddd")
    A(f"v_mov_b32 v{KB+2}, 0x3f803f80")
    A(f"v_mov_b32 v{KB+3}, 0")
    for r in range(16): A(f"v_mov_b32 v{O+r}, 0")
    for r in range(8, 16): A(f"v_mov_b32 v{S1+r}, 0")
    for r in range(4): A(f"v_mov_b32 v{V2+r}, 0")
    A("s_mov_b32 s6, 0x3334")
    A("v_mul_u32_u24 v93, s6, v89")
    A("v_lshrrev_b32 v93, 16, v93")
    A("v_mul_u32_u24 v94, 5, v93")
    A("v_sub_u32 v94, v89, v94")
    A("v_lshrrev_b32 v95, 1, v94")
    A("v_lshlrev_b32 v95, 9, v95")
    A("v_lshl_add_u32 v95, v93, 4, v95")
    A("v_and_b32 v94, 1, v94")
    A("v_lshl_add_u32 v95, v94, 3, v95")
    A("s_waitcnt vmcnt(11)")
    for r in range(4):
        A(f"v_add_f32 v{KP+r}, v{KP+r}, v{KP+4+r}")
        A(f"v_add_f32 v{KP+8+r}, v{KP+8+r}, v{KP+12+r}")
    for r in range(4): A(f"v_add_f32 v{KP+r}, v{KP+r}, v{KP+8+r}")
    for r in range(4): A(f"v_add_f32_dpp v{KP+r}, v{KP+r}, v{KP+r} quad_perm:[1,0,3,2] row_mask:0xf bank_mask:0xf")
    for r in range(4): A(f"v_add_f32_dpp v{KP+r}, v{KP+r}, v{KP+r} quad_perm:[2,3,0,1] row_mask:0xf bank_mask:0xf")
    A(f"v_cvt_pk_bf16_f32 v{KP}, v{KP}, v{KP+1}")
    A(f"v_cvt_pk_bf16_f32 v{KP+1}, v{KP+2}, v{KP+3}")
    A(f"ds_write_b64 v95, {v(KP,2)} offset:{IMG}")
    A("s_waitcnt vmcnt(3)")
    for ror in (8, 4, 2, 1):
        A(f"v_max_f32_dpp v92, v92, v92 row_ror:{ror} row_mask:0xf bank_mask:0xf")
    A("v_mov_b32 v93, v92")
    A("v_permlane16_swap_b32 v92, v93")
    A("v_max_f32 v92, v92, v93")
    A("v_mov_b32 v93, v92")
    A("v_permlane32_swap_b32 v92, v93")
    A("v_max_f32 v92, v92, v93")
    A(f"v_mul_f32 v92, v92, v{Q2+2}")
    A("v_sqrt_f32 v92, v92")
    A(f"v_mul_f32 v92, {f2i(1.03125)}, v92")
    negm_pack(A, Q2 + 2, 92, 93)
    A(f"v_mov_b32 v{Q2+3}, 0")
    A(f"v_mov_b32 v{PQ2+2}, 0")
    A(f"v_mov_b32 v{PQ2+3}, 0")
    A("s_waitcnt lgkmcnt(0)")
    A("s_barrier")
    stamp(A, 3)
    if STAMPS: A("s_waitcnt lgkmcnt(0)")
    G1, G2 = 120, 124
    A(f"ds_read_b128 {v(G1,4)}, v{DV} offset:{IMG}")
    A(f"v_lshlrev_b32 v93, 1, v{KBA}")
    A(f"ds_read_b64 {v(G2,2)}, v93 offset:{IMG+1024}")
    A(f"ds_read_b128 {v(KA,4)}, v{KAA}")
    A(f"ds_read_b64 {v(KB,2)}, v{KBA} offset:1024")
    A(f"v_mov_b32 v{G2+2}, 0")
    A(f"v_mov_b32 v{G2+3}, 0")
    OB = 96
    A("s_waitcnt lgkmcnt(2)")
    A(f"v_mfma_f32_32x32x16_bf16 {v(OB,16)}, {v(G1,4)}, {v(PQ1,4)}, 0")
    A(f"v_mfma_f32_32x32x16_bf16 {v(OB,16)}, {v(G2,4)}, {v(PQ2,4)}, {v(OB,16)}")
    A("s_waitcnt lgkmcnt(0)")
    A(f"v_mfma_f32_32x32x16_bf16 {v(S0,16)}, {v(KA,4)}, {v(Q1,4)}, 0")
    A(f"v_mfma_f32_32x32x16_bf16 {v(S0,16)}, {v(KB,4)}, {v(Q2,4)}, {v(S0,16)}")
    A(f"ds_read_b128 {v(KA,4)}, v{KAA} offset:{KVREC}")
    A(f"ds_read_b64 {v(KB,2)}, v{KBA} offset:{KVREC+1024}")
    A(f"ds_read_b128 {v(V1,4)}, v{VA} offset:1280")
    A(f"s_mov_b32 s26, {O_OFF}")
    A(f"s_mov_b32 s27, {O_OFF + 2048*1280}")
    l2 = norm_store(A, OB, 84, f2i(1e-6), "s27")
    finish_store(A, OB, l2, 84, "s27")
    stamp(A, 4)
    if STAMPS: A("s_waitcnt lgkmcnt(0)")
    A("s_mov_b32 s8, 0")
    A(f"s_mov_b32 s9, {2*CH}")
    A("s_mov_b32 s10, 0")
    A(f"s_mov_b32 s34, {CH}")
    A(f"s_mov_b32 s35, {(-2*CH) & 0xffffffff}")
    A(".p2align 6")
    A.label("k2_loop")
    start = len(A.lines)
    for i in range(8):
        S = S0 if i % 2 == 0 else S1
        S2 = S1 if i % 2 == 0 else S0
        e = lambda r: A(f"v_exp_f32 v{S+r}, v{S+r}")
        if i == 6:
            A("s_waitcnt vmcnt(0)")
            A("s_barrier")
            A(f"s_add_u32 s10, s10, {CH}")
            A(f"s_cmp_eq_u32 s10, {3*CH}")
            A("s_cselect_b32 s11, s35, s34")
            A("s_cselect_b32 s10, 0, s10")
            A(f"v_add_u32 v{KAA}, s11, v{KAA}")
            A(f"v_add_u32 v{KBA}, s11, v{KBA}")
            A("s_cmp_ge_u32 s8, 6")
            A("s_cbranch_scc1 k2_nodma")
            dma(["s_add_u32 m0, s25, s9"])
            A(f"s_add_u32 s9, s9, {CH}")
            A(f"s_cmp_eq_u32 s9, {3*CH}")
            A("s_cselect_b32 s9, 0, s9")
            A.label("k2_nodma")
        e(0); e(1)
        A("s_waitcnt lgkmcnt(3)")
        A(f"v_smfmac_f32_32x32x32_bf16 {v(O,16)}, {v(V2,4)}, {v(S2+8,8)}, v{IDX}")
        A(f"ds_read_b128 {v(V2,4)}, v{VA} offset:{i*KVREC + 1280 + 672}")
        if i == 7: A(f"v_add_u32 v{VA}, s11, v{VA}")
        e(2); e(3); e(4); e(5)
        A("s_waitcnt lgkmcnt(3)")
        A(f"v_mfma_f32_32x32x16_bf16 {v(S2,16)}, {v(KA,4)}, {v(Q1,4)}, 0")
        A(f"ds_read_b128 {v(KA,4)}, v{KAA} offset:{((i+2)%8)*KVREC}")
        e(6); e(7); e(8); e(9)
        A("s_waitcnt lgkmcnt(3)")
        A(f"v_mfma_f32_32x32x16_bf16 {v(S2,16)}, {v(KB,4)}, {v(Q2,4)}, {v(S2,16)}")
        A(f"ds_read_b64 {v(KB,2)}, v{KBA} offset:{((i+2)%8)*KVREC + 1024}")
        e(10); e(11); e(12); e(13)
        A("s_waitcnt lgkmcnt(3)")
        A(f"v_smfmac_f32_32x32x32_bf16 {v(O,16)}, {v(V1,4)}, {v(S,8)}, v{IDX}")
        A(f"ds_read_b128 {v(V1,4)}, v{VA} offset:{((i+1)%8)*KVREC + 1280}")
        if i == 7:
            A("s_add_u32 s8, s8, 1")
            A("s_cmp_lt_u32 s8, 8")
        else:
            A("s_nop 1")
        e(14); e(15)
    A("s_cbranch_scc1 k2_loop")
    check_loop(A.lines[start:], "k2")
    stamp(A, 5)
    A("s_waitcnt lgkmcnt(0)")
    A(f"v_smfmac_f32_32x32x32_bf16 {v(O,16)}, {v(V2,4)}, {v(S1+8,8)}, v{IDX}")
    l2 = norm_store(A, O, 84, None, "s26")
    A(f"v_cmp_nle_f32 vcc, {f2i(2.0**-60)}, v{l2}")
    A("s_cbranch_vccnz k2_slow")
    A.label("k2_fin")
    finish_store(A, O, l2, 84, "s26")
    if STAMPS: A("s_waitcnt vmcnt(0)")
    stamp(A, 6); stamp_flush(A, 1)
    A.label("k2_end")
    A("s_endpgm")
    A.label("k2_slow")
    M = 90
    A(f"v_mov_b32 v{Q2+2}, 0")
    A(f"v_mov_b32 v{M}, 0xff800000")
    A(f"v_and_b32 v91, 31, v{VL}")
    A(f"v_lshlrev_b32 v92, 3, v91")
    A(f"v_lshrrev_b32 v93, 5, v{VL}")
    A(f"v_mul_u32_u24 v93, 336, v93")
    A(f"v_lshl_add_u32 v93, v91, 4, v93")
    A("s_mov_b32 s8, 0")
    A("s_mov_b32 s9, s28")
    A.label("k2_s1")
    A(f"buffer_load_dwordx4 {v(KA,4)}, v{DV}, s[12:15], s9 offen")
    A(f"buffer_load_dwordx2 {v(KB,2)}, v92, s[12:15], s9 offen offset:1024")
    A("s_waitcnt vmcnt(0)")
    A(f"v_mfma_f32_32x32x16_bf16 {v(S0,16)}, {v(KA,4)}, {v(Q1,4)}, 0")
    A(f"v_mfma_f32_32x32x16_bf16 {v(S0,16)}, {v(KB,4)}, {v(Q2,4)}, {v(S0,16)}")
    for r in range(0, 16, 2): A(f"v_max3_f32 v{M}, v{S0+r}, v{S0+r+1}, v{M}")
    A(f"s_add_u32 s9, s9, {KVREC}")
    A("s_add_u32 s8, s8, 1")
    A("s_cmp_lt_u32 s8, 64")
    A("s_cbranch_scc1 k2_s1")
    A(f"v_mov_b32 v94, v{M}")
    A(f"v_permlane32_swap_b32 v{M}, v94")
    A(f"v_max_f32 v{M}, v{M}, v94")
    negm_pack(A, Q2 + 2, M, 94)
    A(f"v_cmp_gt_u32 vcc, 32, v{VL}")
    A(f"v_cndmask_b32 v{Q2+2}, 0, v{Q2+2}, vcc")
    for r in range(16): A(f"v_mov_b32 v{O+r}, 0")
    A("s_mov_b32 s8, 0")
    A("s_mov_b32 s9, s28")
    A.label("k2_s2")
    A(f"buffer_load_dwordx4 {v(KA,4)}, v{DV}, s[12:15], s9 offen")
    A(f"buffer_load_dwordx2 {v(KB,2)}, v92, s[12:15], s9 offen offset:1024")
    A(f"buffer_load_dwordx4 {v(V1,4)}, v93, s[12:15], s9 offen offset:1280")
    A(f"buffer_load_dwordx4 {v(V2,4)}, v93, s[12:15], s9 offen offset:{1280+672}")
    A("s_waitcnt vmcnt(0)")
    A(f"v_mfma_f32_32x32x16_bf16 {v(S0,16)}, {v(KA,4)}, {v(Q1,4)}, 0")
    A(f"v_mfma_f32_32x32x16_bf16 {v(S0,16)}, {v(KB,4)}, {v(Q2,4)}, {v(S0,16)}")
    for r in range(16): A(f"v_exp_f32 v{S0+r}, v{S0+r}")
    A(f"v_smfmac_f32_32x32x32_bf16 {v(O,16)}, {v(V1,4)}, {v(S0,8)}, v{IDX}")
    A(f"v_smfmac_f32_32x32x32_bf16 {v(O,16)}, {v(V2,4)}, {v(S0+8,8)}, v{IDX}")
    A(f"s_add_u32 s9, s9, {KVREC}")
    A("s_add_u32 s8, s8, 1")
    A("s_cmp_lt_u32 s8, 64")
    A("s_nop 7")
    A("s_cbranch_scc1 k2_s2")
    A("s_nop 15")
    l2b = norm_store(A, O, 84, None, "s26")
    A("s_nop 1")
    A("s_branch k2_fin")
    lines, viol = pad_hazards(A.lines)
    return lines, NV, LDS
```

```python
from asmlib import *
from layout import *
import os

SCR = 102400
LDS = SCR + 1024
VL = 1
VD = 2
VO = 5
WA = 6
OUT = 7
OF = 16
WF = 96
ACC = 112
NV = 132

class Lgkm:
    def __init__(self, A): self.A = A; self.q = []
    def issue(self, tag, text): self.A(text); self.q.append(tag)
    def wait(self, tag):
        idx = [i for i, t in enumerate(self.q) if t == tag]
        if not idx: return
        last = idx[-1]
        n = len(self.q) - 1 - last
        assert n <= 15
        self.A(f"s_waitcnt lgkmcnt({n})")
        self.q = self.q[last+1:]

def gen_k3():
    A = Asm()
    A("s_cmp_ge_u32 s2, 256")
    A("s_cbranch_scc1 k3_end")
    stamp(A, 0, True); stamp(A, 1)
    A("s_load_dwordx2 s[32:33], s[0:1], 16")
    A("s_load_dwordx2 s[34:35], s[0:1], 40")
    A("s_load_dwordx2 s[8:9], s[0:1], 48")
    A("s_load_dwordx2 s[12:13], s[0:1], 64")
    A(f"v_and_b32 v{VL}, 63, v0")
    A("v_lshrrev_b32 v8, 6, v0")
    A("s_nop 0")
    A("v_readfirstlane_b32 s16, v8")
    A("s_and_b32 s3, s2, 7")
    A("s_lshr_b32 s40, s2, 3")
    A("s_lshr_b32 s17, s3, 2")
    A("s_and_b32 s18, s3, 3")
    A("s_lshl_b32 s18, s18, 2")
    A("s_and_b32 s41, s40, 3")
    A("s_add_u32 s18, s18, s41")
    A("s_lshr_b32 s19, s40, 2")
    A("s_mul_i32 s42, s16, 192")
    A("s_mul_i32 s43, s19, 160")
    A("s_mov_b32 s44, 0x199a")
    for t in range(3):
        u, rho, cu, k, tmp = 8, 9, 10, 11, 12
        A(f"v_add_u32 v{u}, s42, v{VL}")
        if t: A(f"v_add_u32 v{u}, {64*t}, v{u}")
        A(f"v_mul_u32_u24 v{rho}, s44, v{u}")
        A(f"v_lshrrev_b32 v{rho}, 16, v{rho}")
        A(f"v_mul_u32_u24 v{tmp}, 10, v{rho}")
        A(f"v_sub_u32 v{cu}, v{u}, v{tmp}")
        A(f"v_and_b32 v{k}, 0xe3, v{rho}")
        A(f"v_bfe_u32 v{tmp}, v{rho}, 2, 2")
        A(f"v_lshl_add_u32 v{k}, v{tmp}, 3, v{k}")
        A(f"v_bfe_u32 v{tmp}, v{rho}, 4, 1")
        A(f"v_lshl_add_u32 v{k}, v{tmp}, 2, v{k}")
        A(f"v_mul_u32_u24 v{k}, 1280, v{k}")
        A(f"v_lshl_add_u32 v{k}, v{cu}, 4, v{k}")
        A(f"v_add_u32 v{k}, s43, v{k}")
        A(f"v_cmp_gt_u32 vcc, 1280, v{u}")
        A(f"v_mov_b32 v{tmp}, 0x7f000000")
        A(f"v_cndmask_b32 v{VD+t}, v{tmp}, v{k}, vcc")
    A("s_lshl_b32 s42, s18, 7")
    A("s_lshl_b32 s46, s16, 4")
    A("s_add_u32 s42, s42, s46")
    A(f"v_and_b32 v8, 15, v{VL}")
    A(f"v_lshrrev_b32 v9, 4, v{VL}")
    A("v_add_u32 v8, s42, v8")
    A("v_mul_u32_u24 v10, 1280, v8")
    A(f"v_lshl_add_u32 v{VO}, v9, 4, v10")
    A("s_mul_i32 s46, s17, 1280")
    A("s_add_u32 s46, s46, s43")
    A("v_lshlrev_b32 v10, 1, v10")
    A("v_lshl_add_u32 v10, v9, 3, v10")
    A(f"v_add_u32 v{OUT}, s46, v10")
    A(f"v_lshrrev_b32 v10, 2, v{VL}")
    A("v_mul_u32_u24 v10, 160, v10")
    A(f"v_and_b32 v11, 3, v{VL}")
    A(f"v_lshl_add_u32 v{WA}, v11, 3, v10")
    A(f"s_mul_i32 s20, s17, {2048*1280}")
    A(f"s_add_u32 s20, s20, {O_OFF}")
    for t in range(3):
        A(f"s_mul_i32 s{24+t}, s16, 3")
        A(f"s_add_u32 s{24+t}, s{24+t}, {t}")
        A(f"s_cmp_lt_u32 s{24+t}, 20")
        A(f"s_cselect_b32 s{28+t}, 20480, 0")
        A(f"s_lshl_b32 s{24+t}, s{24+t}, 10")
        A(f"s_cmp_eq_u32 s{28+t}, 0")
        A(f"s_cselect_b32 s{24+t}, {SCR}, s{24+t}")
    A("s_waitcnt lgkmcnt(0)")
    A("s_cmp_eq_u32 s17, 0")
    A("s_cselect_b32 s4, s32, s34")
    A("s_cselect_b32 s5, s33, s35")
    A(f"s_mov_b32 s6, {640*640*2}")
    A("s_mov_b32 s7, 0x20000")
    A(f"s_mov_b32 s10, {2048*1280*2}")
    A("s_mov_b32 s11, 0x20000")
    A(f"s_mov_b32 s14, {WS_SIZE}")
    A("s_mov_b32 s15, 0x20000")
    A("s_mov_b32 s21, 0")
    OOB = 14
    A("v_mov_b32 v14, 0x7f000000")
    stamp(A, 6)
    for st in range(5):
        for t in range(3):
            A(f"s_mov_b32 m0, s{24+t}")
            A(f"s_add_u32 s{24+t}, s{24+t}, s{28+t}")
            if os.environ.get("NODMA"): A(f"buffer_load_dwordx4 v{OOB}, s[4:7], s21 offen lds")
            else: A(f"buffer_load_dwordx4 v{VD+t}, s[4:7], s21 offen lds")
        for ks in range(4):
            kk = 4 * st + ks
            A(f"buffer_load_dwordx4 {v(OF+4*kk,4)}, v{OOB if os.environ.get('NOO') else VO}, s[12:15], s20 offen offset:{64*kk}")
        A(f"s_add_u32 s21, s21, {128*1280}")
    stamp(A, 2)
    for r in range(ACC, ACC + 20): A(f"v_mov_b32 v{r}, 0")
    for st in range(5):
        A(f"s_waitcnt vmcnt({7*(4-st)})")
        A("s_barrier")
        if st in (0, 4):
            stamp(A, 3 if st == 0 else 4)
            if STAMPS: A("s_waitcnt lgkmcnt(0)")
        L = Lgkm(A)
        def rdW(f):
            ks, j = divmod(f, 5)
            r = WF + 4 * (f % 4)
            off = (st % 3) * 20480 + ks * 5120 + 32 * j
            L.issue(f, f"ds_read_b64_tr_b16 {v(r,2)}, v{WA} offset:{off}")
            L.issue(f, f"ds_read_b64_tr_b16 {v(r+2,2)}, v{WA} offset:{off + 2560}")
        if st == 3: A(f"v_add_u32 v{WA}, 61440, v{WA}")
        rdW(0); rdW(1); rdW(2)
        for f in range(20):
            ks, j = divmod(f, 5)
            L.wait(f)
            r = WF + 4 * (f % 4)
            d = ACC + 4 * j
            A(f"v_mfma_f32_16x16x32_bf16 {v(d,4)}, {v(r,4)}, {v(OF+4*(4*st+ks),4)}, {v(d,4)}")
            if f + 3 < 20: rdW(f + 3)
    stamp(A, 5)
    for j in range(5):
        d = ACC + 4 * j
        A(f"v_cvt_pk_bf16_f32 v{16+2*j}, v{d}, v{d+1}")
        A(f"v_cvt_pk_bf16_f32 v{17+2*j}, v{d+2}, v{d+3}")
        A(f"buffer_store_dwordx2 {v(16+2*j,2)}, v{OUT}, s[8:11], 0 offen offset:{32*j}")
    if STAMPS: A("s_waitcnt vmcnt(0)")
    stamp_flush(A, 2, vt=40)
    A.label("k3_end")
    A("s_endpgm")
    lines, viol = pad_hazards(A.lines)
    return lines, NV, LDS
```

```python
import sys
HDR = """; @launch grid=({g},1,1) block=({b},1,1) lds={lds}
.amdgcn_target "amdgcn-amd-amdhsa--gfx950"
.text
.globl {name}_kernel
.p2align 8
.type {name}_kernel,@function
{name}_kernel:
  s_load_dwordx2 s[4:5], s[0:1], 8
  s_waitcnt lgkmcnt(0)
  s_mov_b32 s8, s4
  s_mov_b32 s9, s5
  s_mov_b32 s10, 0x400000
  s_mov_b32 s11, 0x20000
  v_lshrrev_b32 v1, 6, v0
  s_mul_i32 s3, s2, {nw}
  v_add_u32 v1, s3, v1
  v_lshlrev_b32 v1, 2, v1
{init}
  s_barrier
  s_memtime s[12:13]
  s_waitcnt lgkmcnt(0)
  s_mov_b32 s16, {iters}
.p2align 6
Lloop:
{body}
  s_sub_u32 s16, s16, 1
  s_cmp_lg_u32 s16, 0
  s_cbranch_scc1 Lloop
  s_nop 15
  s_memtime s[14:15]
  s_waitcnt lgkmcnt(0)
  s_sub_u32 s14, s14, s12
  v_mov_b32 v2, s14
  buffer_store_dword v2, v1, s[8:11], 0 offen
  s_waitcnt vmcnt(0)
  s_endpgm
.section .rodata,"a"
.p2align 6
.amdhsa_kernel {name}_kernel
  .amdhsa_next_free_vgpr {nvt}
  .amdhsa_next_free_sgpr 102
  .amdhsa_accum_offset {nv}
  .amdhsa_group_segment_fixed_size 0
  .amdhsa_kernarg_size 32
  .amdhsa_user_sgpr_count 2
  .amdhsa_user_sgpr_kernarg_segment_ptr 1
  .amdhsa_system_sgpr_workgroup_id_x 1
.end_amdhsa_kernel
"""
def gen(name, body, b, iters=100, nv=128, g=256, lds=0, init="", rep=16, nacc=0):
    body = body * rep
    ini = "\n".join(f"  v_mov_b32 v{i}, 0.5" for i in range(4, nv)) + "\n" + "\n".join(f"  v_accvgpr_write_b32 a{i}, 0" for i in range(nacc)) + "\n" + init
    s = HDR.format(name=name, g=g, b=b, lds=lds, nw=b//64, init=ini, iters=iters, body="\n".join("  "+x for x in body), nv=nv, nvt=nv+nacc)
    open(name + ".s", "w").write(s)
    return name + ".s"
```

```python
import re, sys
from gen1lib import gen
src = open('fused.s').read()
body = src[src.index("f_ga_loop:\n") + 11: src.index("s_cbranch_scc1 f_ga_loop")]
lines = [l.strip() for l in body.split("\n") if l.strip()]
i0 = next(i for i, l in enumerate(lines) if l.startswith("s_cbranch_vccz")); i1 = next(i for i, l in enumerate(lines) if l.startswith("f_ga_ok"))
lines = lines[:i0] + lines[i1+1:]
lines = [l for l in lines if not l.startswith("s_cmp_lt")]
ini = """v_and_b32 v3, 63, v0
v_and_b32 v10, 15, v3
v_lshrrev_b32 v11, 4, v3
v_lshrrev_b32 v12, 2, v10
v_and_b32 v13, 3, v10
v_lshl_add_u32 v14, v12, 3, v13
v_bfe_u32 v15, v10, 1, 1
v_lshl_add_u32 v15, v12, 1, v15
v_xor_b32 v15, v15, v11
v_lshlrev_b32 v15, 4, v15
v_lshl_add_u32 v50, v14, 7, v15
v_xor_b32 v51, 64, v50
v_lshrrev_b32 v15, 2, v3
v_mul_u32_u24 v15, 480, v15
v_mul_u32_u24 v16, 40, v13
v_add_u32 v52, v15, v16
v_lshl_add_u32 v53, v13, 3, v15
v_mov_b32 v246, 0
v_mov_b32 v247, 64
s_mov_b32 s40, 0
s_mov_b32 s41, 0
s_mov_b32 s42, 0
s_mov_b32 s43, 0
s_mov_b32 s45, 0"""
files = []
def g(name, ls): files.append(gen(name, ls, 256, init=ini, rep=2, lds=65536, nv=252))
g("L_full", lines)
g("L_nowait", [l for l in lines if not l.startswith("s_waitcnt")])
g("L_nox", [l for l in lines if not l.startswith("ds_read_b128")])
g("L_novalu", [l for l in lines if not l.startswith(("v_add", "v_cmp", "v_mov", "ds_write", "ds_read_b32", "s_add", "s_cmp", "s_csel"))])
g("L_nods", [l for l in lines if not l.startswith(("ds_", "s_waitcnt"))])
g("L_wg", [l.replace("v53", "v52") for l in lines])
print(" ".join(files))
```
